```python
import torch

def _softmax(x, axis=-1):
    return torch.softmax(x, dim=axis)

def _gelu(x):
    return torch.nn.functional.gelu(x, approximate='tanh')

def _silu(x):
    return torch.nn.functional.silu(x)

def _sigmoid(x):
    return torch.sigmoid(x)

def _layernorm(x, axis=-1, eps=1e-05):
    m = x.mean(dim=axis, keepdim=True)
    v = x.var(dim=axis, keepdim=True, unbiased=False)
    return (x - m) / torch.sqrt(v + eps)

def _scatter_add(tgt, idx, src, axis=0):
    return tgt.clone().index_add_(axis, idx, src)

def _segment_sum(src, seg, n):
    out = torch.zeros((n,) + src.shape[1:], dtype=src.dtype)
    return out.index_add_(0, seg, src)

def _pad(x, pw):
    flat = tuple((v for pair in reversed(pw) for v in pair))
    return torch.nn.functional.pad(x, flat)
kernel_name = 'adaLN_cond__ssm_conv_s4__mixer_channel_mlp__prompt'

def setup_inputs():

    _w = lambda a: (lambda t: t.to(torch.bfloat16) if t.is_floating_point() else t)(torch.as_tensor(a))

    def _A_setup():
        B, L, D, N = (1, 2048, 576, 128)
        A_re = -(lambda _x: torch.exp(torch.as_tensor(_x)))((lambda *s: torch.randn(*s, dtype=torch.bfloat16) * 3.2)(D, N))
        A_im = torch.pi * (lambda *s: torch.randn(*s, dtype=torch.bfloat16) * 0.05)(D, N)
        B_re = (lambda *s: torch.randn(*s, dtype=torch.bfloat16) * 0.1)(D, N)
        B_im = (lambda *s: torch.randn(*s, dtype=torch.bfloat16) * 0.1)(D, N)
        C_re = (lambda *s: torch.randn(*s, dtype=torch.bfloat16) * 0.1)(D, N)
        C_im = (lambda *s: torch.randn(*s, dtype=torch.bfloat16) * 0.1)(D, N)
        log_dt = (lambda *s: torch.randn(*s, dtype=torch.bfloat16) * 0.05)(D) * 0.5 - 4.0
        Dskip = (lambda *s: torch.randn(*s, dtype=torch.bfloat16) * 0.05)(D)
        return {'u': _w((lambda *s: torch.randn(*s, dtype=torch.bfloat16) * 0.05)(B, L, D)), 'A_re': _w(A_re), 'A_im': _w(A_im), 'B_re': _w(B_re), 'B_im': _w(B_im), 'C_re': _w(C_re), 'C_im': _w(C_im), 'log_dt': _w(log_dt), 'Dskip': _w(Dskip)}
    _A_in = _A_setup()

    def _B_setup():
        B, S, D, F = (1, 2048, 576, 4608)
        return {'x': _w((lambda *s: torch.randn(*s, dtype=torch.bfloat16) * 0.05)(B, S, D)), 'w1': _w((lambda *s: torch.randn(*s, dtype=torch.bfloat16) * 3.2)(D, F) * D ** (-0.5)), 'b1': _w((lambda *s: torch.randn(*s, dtype=torch.bfloat16) * 1.6)(F)), 'w2': _w((lambda *s: torch.randn(*s, dtype=torch.bfloat16) * 0.8)(F, D) * F ** (-0.5)), 'b2': _w((lambda *s: torch.randn(*s, dtype=torch.bfloat16) * 0.8)(D))}
    _B_in = _B_setup()
    return {'A_u': _A_in['u'], 'A_A_re': _A_in['A_re'], 'A_A_im': _A_in['A_im'], 'A_B_re': _A_in['B_re'], 'A_B_im': _A_in['B_im'], 'A_C_re': _A_in['C_re'], 'A_C_im': _A_in['C_im'], 'A_log_dt': _A_in['log_dt'], 'A_Dskip': _A_in['Dskip'], 'B_x': _B_in['x'], 'B_w1': _B_in['w1'], 'B_b1': _B_in['b1'], 'B_w2': _B_in['w2'], 'B_b2': _B_in['b2'], 'c': _w((lambda *s: torch.randn(*s, dtype=torch.bfloat16) * 0.2)(1, 576) * 8.0), 'w_mod': _w((lambda *s: torch.randn(*s, dtype=torch.bfloat16) * 0.2)(576, 6 * 576) * 576 ** (-0.5) * 8.0)}

def reference(A_u, A_A_re, A_A_im, A_B_re, A_B_im, A_C_re, A_C_im, A_log_dt, A_Dskip, B_x, B_w1, B_b1, B_w2, B_b2, c, w_mod):

    def _A_ref(u, A_re, A_im, B_re, B_im, C_re, C_im, log_dt, Dskip):
        Bsz, L, D = u.shape
        dt = torch.exp(log_dt)[:, None]
        A = A_re + 1j * A_im
        Bc = B_re + 1j * B_im
        Cc = C_re + 1j * C_im
        logdA = dt * A
        dB = dt * Bc
        l = (lambda x, dt: x.to(dt))(torch.arange(L), A_re.dtype)
        P = torch.exp(logdA[:, :, None] * l[None, None, :])
        K = torch.einsum('dn,dnl,dn->dl', Cc, P, dB).real
        L2 = 2 * L
        Kp = _pad(K, ((0, 0), (0, L)))
        up = (lambda x, *d: x.permute(*d))(u, 0, 2, 1)
        up = _pad(up, ((0, 0), (0, 0), (0, L)))
        Kf = (lambda x, axes=(-2, -1): torch.fft.rfft2(x.float(), dim=axes))(Kp[:, None, :], axes=(-2, -1))
        Uf = (lambda x, axes=(-2, -1): torch.fft.rfft2(x.float(), dim=axes))(up[:, :, None, :], axes=(-2, -1))
        Yf = Uf * Kf[None, :, :, :]
        y = (lambda x, s, axes=(-2, -1): torch.fft.irfft2(x, s=s, dim=axes).to(torch.bfloat16))(Yf, (1, L2), axes=(-2, -1))[:, :, 0, :L]
        y = (lambda x, *d: x.permute(*d))(y, 0, 2, 1) + u * Dskip[None, None, :]
        return y

    def _B_ref(x, w1, b1, w2, b2):
        y = _layernorm(x, axis=-1)
        h = _gelu(torch.einsum('bsd,df->bsf', y, w1) + b1)
        return torch.einsum('bsf,fd->bsd', h, w2) + b2
    x = A_u
    mod = (_silu(c) @ w_mod).reshape(c.shape[0], 6, 1, -1)
    sa, ca, ga, sb, cb, gb = (mod[:, 0].clone(), mod[:, 1].clone(), mod[:, 2].clone(), mod[:, 3].clone(), mod[:, 4].clone(), mod[:, 5].clone())
    h = _layernorm(x, axis=-1) * (1 + ca) + sa
    x = x + ga * _A_ref(h, A_A_re, A_A_im, A_B_re, A_B_im, A_C_re, A_C_im, A_log_dt, A_Dskip)
    h = _layernorm(x, axis=-1) * (1 + cb) + sb
    x = x + gb * _B_ref(h, B_w1, B_b1, B_w2, B_b2)
    return x
```

```python
import re

TRANS = ('v_exp_f32', 'v_log_f32', 'v_rcp_f32', 'v_rsq_f32', 'v_sqrt_f32', 'v_sin_f32', 'v_cos_f32', 'v_rcp_iflag_f32')
_REG = re.compile(r'(?<![\w.])([vas])(?:\[(\d+):(\d+)\]|(\d+))(?![\w])')

def regs_of(tok):
    out = set()
    t = tok.strip()
    for m in _REG.finditer(t):
        k = m.group(1)
        if m.group(4) is not None:
            out.add((k, int(m.group(4))))
        else:
            for i in range(int(m.group(2)), int(m.group(3)) + 1):
                out.add((k, i))
    if re.search(r'\bvcc(_lo|_hi)?\b', t): out.add(('vcc', 0))
    if re.search(r'\bexec(_lo|_hi)?\b', t): out.add(('exec', 0))
    if re.search(r'\bm0\b', t): out.add(('m0', 0))
    return out

def split_ops(s):
    ops, depth, cur = [], 0, ''
    for ch in s:
        if ch in '[(': depth += 1
        if ch in '])': depth -= 1
        if ch == ',' and depth == 0:
            ops.append(cur.strip()); cur = ''
        else:
            cur += ch
    if cur.strip(): ops.append(cur.strip())
    return ops

def mfma_info(op):
    if op.startswith('v_mfma_f32_16x16x4_f32'): return ('sgemm', 8)
    if op.startswith('v_mfma_f32_32x32x2_f32'): return ('sgemm', 16)
    if '32x32x16' in op: return ('xdl', 8)
    if '16x16x32' in op: return ('xdl', 4)
    raise ValueError(op)

class Ins:
    __slots__ = ('op', 'text', 'cls', 'wr', 'rd', 'A', 'B', 'C', 'kind', 'passes', 'dpp', 'states', 'wide_store', 'data')

def parse(line):
    line = line.split(';')[0].strip()
    parts = line.split(None, 1)
    op = parts[0]
    rest = parts[1] if len(parts) > 1 else ''
    I = Ins(); I.op = op; I.text = line; I.wr = set(); I.rd = set(); I.A = I.B = I.C = set()
    I.kind = None; I.passes = 0; I.dpp = False; I.states = 1; I.wide_store = False; I.data = set()
    mo = re.search(r'\boffset:(\d+)', rest)
    if mo:
        lim = 4095 if op.startswith('buffer_') else (65535 if op.startswith('ds_') else (1 << 20) - 1)
        assert int(mo.group(1)) <= lim, 'offset too large: ' + line
    ops = split_ops(rest)
    if op == 's_nop':
        I.cls = 'salu'; I.states = int(rest, 0) + 1; return I
    if op.startswith('v_mfma'):
        I.cls = 'mfma'; I.kind, I.passes = mfma_info(op)
        I.wr = regs_of(ops[0]); I.A = regs_of(ops[1]); I.B = regs_of(ops[2]); I.C = regs_of(ops[3].split()[0])
        I.rd = I.A | I.B | I.C
        return I
    if op.startswith('v_'):
        I.cls = 'valu'
        I.dpp = ('_dpp' in op) or ('quad_perm' in rest) or ('row_' in rest) or ('wave_' in rest)
        base = op.replace('_e32', '').replace('_e64', '').replace('_dpp', '').replace('_sdwa', '')
        first = [o.split()[0] if i == len(ops) - 1 and not o.startswith('-') and not o.startswith('abs') else o for i, o in enumerate(ops)]
        if base == 'v_nop': return I
        if base.startswith('v_permlane') and 'swap' in base:
            I.wr = regs_of(ops[0]) | regs_of(ops[1]); I.rd = set(I.wr); return I
        I.wr = regs_of(ops[0])
        srcs = ops[1:]
        if base in ('v_add_co_u32', 'v_sub_co_u32', 'v_subrev_co_u32', 'v_addc_co_u32', 'v_subb_co_u32', 'v_div_scale_f32', 'v_mad_u64_u32'):
            I.wr |= regs_of(ops[1]); srcs = ops[2:]
        for o in srcs: I.rd |= regs_of(o)
        if base.startswith('v_fmac') or base.startswith('v_dot2c') or base.startswith('v_pk_fmac') or base == 'v_writelane_b32':
            I.rd |= regs_of(ops[0])
        if base.startswith('v_cmpx'): I.wr.add(('exec', 0))
        if I.dpp and ('bound_ctrl' not in rest or 'row_mask:0xf' not in rest or 'bank_mask:0xf' not in rest):
            I.rd |= regs_of(ops[0])
        return I
    if op.startswith('buffer_') or op.startswith('global_'):
        I.cls = 'vmem'
        lds = bool(re.search(r'\blds\b', rest)) or '_lds_' in op
        if 'load' in op:
            if lds:
                for o in ops: I.rd |= regs_of(o)
                I.rd.add(('m0', 0)); I.kind = 'ldsdma'
            else:
                I.wr = regs_of(ops[0])
                for o in ops[1:]: I.rd |= regs_of(o)
        elif 'store' in op or 'atomic' in op:
            for o in ops: I.rd |= regs_of(o)
            d = ops[0] if op.startswith('buffer_') else ops[1]
            I.data = regs_of(d)
            I.wide_store = ('x3' in op or 'x4' in op)
            if 'atomic' in op and 'sc0' in rest: I.wr = regs_of(ops[0])
        else:
            pass
        return I
    if op.startswith('ds_'):
        I.cls = 'ds'
        if op.startswith('ds_read') or op.startswith('ds_bpermute') or op.startswith('ds_permute') or op.startswith('ds_swizzle') or '_rtn' in op:
            I.wr = regs_of(ops[0])
            for o in ops[1:]: I.rd |= regs_of(o)
        else:
            for o in ops: I.rd |= regs_of(o)
        return I
    if op.startswith('s_'):
        I.cls = 'salu'
        if op.startswith('s_cmp') or op.startswith('s_cbranch') or op.startswith('s_branch') or op in ('s_waitcnt', 's_barrier', 's_endpgm', 's_sleep', 's_setprio', 's_bitcmp1_b32', 's_bitcmp0_b32'):
            for o in ops: I.rd |= regs_of(o)
        else:
            if ops: I.wr = regs_of(ops[0])
            for o in ops[1:]: I.rd |= regs_of(o)
            if 'saveexec' in op: I.wr.add(('exec', 0))
        return I
    raise ValueError('cannot parse: ' + line)

def is_vg(r): return r[0] in ('v', 'a')
def is_sg(r): return r[0] in ('s', 'vcc')

def need(prev, cur):
    n = 0
    pb = prev.op.replace('_e32', '').replace('_e64', '')
    cb = cur.op.replace('_e32', '').replace('_e64', '')
    if prev.cls == 'valu':
        wv = {r for r in prev.wr if is_vg(r)}
        ws = {r for r in prev.wr if is_sg(r)}
        if cur.cls == 'mfma' and (wv & cur.rd): n = max(n, 2)
        if cur.cls == 'mfma' and ('exec', 0) in prev.wr: n = max(n, 4)
        if cur.cls == 'valu':
            if pb in TRANS and cb not in TRANS and (wv & cur.rd): n = max(n, 1)
            if cur.dpp and (wv & cur.rd): n = max(n, 2)
            if cur.dpp and ('exec', 0) in prev.wr: n = max(n, 5)
            if cb.startswith('v_permlane') and (wv & cur.rd): n = max(n, 2)
            if cb in ('v_readfirstlane_b32', 'v_readlane_b32') and (wv & cur.rd): n = max(n, 1)
            if ws & cur.rd: n = max(n, 4 if cb in ('v_readlane_b32', 'v_writelane_b32', 'v_div_fmas_f32') else 2)
            if ('sdwa' in prev.op and 'dst_sel:DWORD' not in prev.text) and (wv & (cur.rd | cur.wr)): n = max(n, 1)
            if pb.startswith('v_dot'):
                if cb == pb:
                    ops = split_ops(cur.text.split(None, 1)[1])
                    ab = regs_of(ops[1]) | regs_of(ops[2])
                    if wv & ab: n = max(n, 3)
                elif wv & (cur.rd | cur.wr): n = max(n, 3)
        if pb.startswith('v_dot') and cur.cls in ('vmem', 'ds', 'mfma') and (wv & (cur.rd | cur.wr)): n = max(n, 3)
        if cur.cls == 'vmem' and (ws & cur.rd): n = max(n, 5)
        if cur.cls == 'salu' and (ws & cur.rd): n = max(n, 1)
    if prev.cls == 'mfma':
        p = prev.passes
        D = prev.wr
        if prev.kind == 'xdl':
            tv = {2: 5, 4: 8, 8: 12, 16: 20}[p]; tc = {2: 4, 4: 6, 8: 10, 16: 18}[p]; war = {2: 1, 4: 3, 8: 7, 16: 15}[p]
        else:
            tv = {2: 4, 4: 6, 8: 10, 16: 18}[p]; tc = {2: 2, 4: 4, 8: 8, 16: 16}[p]; war = 0
        if cur.cls == 'mfma':
            if D & (cur.A | cur.B): n = max(n, tv)
            if D & cur.C:
                if not (cur.C == D and cur.passes == p and cur.kind == prev.kind): n = max(n, tc)
            elif D & cur.wr: n = max(n, tv)
        elif cur.cls in ('valu', 'vmem', 'ds'):
            if D & (cur.rd | cur.wr): n = max(n, tv)
            if cur.cls == 'valu' and war and (prev.C & cur.wr): n = max(n, war)
    if prev.cls == 'vmem' and prev.wide_store:
        if prev.data & cur.wr: n = max(n, 2 if cur.cls in ('valu', 'mfma') else 1)
    if prev.cls == 'salu' and ('m0', 0) in prev.wr and cur.kind == 'ldsdma': n = max(n, 1)
    return n

class Asm:
    def __init__(self):
        self.lines = []
        self.hist = []
        self.nops = 0
        self.maxv = -1; self.maxs = -1; self.maxa = -1
        self.uid = 0
    def raw(self, s): self.lines.append(s)
    def comment(self, s): self.lines.append('    ; ' + s)
    def label(self, name):
        self.lines.append(name + ':')
    def newlabel(self, pfx='L'):
        self.uid += 1; return f'{pfx}_{self.uid}'
    def reset_stats(self):
        self.maxv = self.maxs = self.maxa = -1; self.hist = []
    def __call__(self, text):
        for line in text.strip().split('\n'):
            line = line.strip()
            if not line or line.startswith(';'):
                continue
            if line.endswith(':'):
                self.label(line[:-1]); continue
            cur = parse(line)
            dist = 0; pad = 0
            for prev in reversed(self.hist):
                n = need(prev, cur)
                if n > dist: pad = max(pad, n - dist)
                dist += prev.states
                if dist >= 20: break
            while pad > 0:
                k = min(pad, 16)
                nop = parse(f's_nop {k-1}')
                self.lines.append(f'    s_nop {k-1}')
                self.hist.append(nop); self.nops += 1
                pad -= k
            self.lines.append('    ' + line)
            self.hist.append(cur)
            if len(self.hist) > 40: self.hist = self.hist[-40:]
            for r in cur.rd | cur.wr:
                if r[0] == 'v': self.maxv = max(self.maxv, r[1])
                elif r[0] == 's': self.maxs = max(self.maxs, r[1])
                elif r[0] == 'a': self.maxa = max(self.maxa, r[1])
    def text(self): return '\n'.join(self.lines) + '\n'
```

```python
import sys, struct, math
sys.path.insert(0, 'dev')
from asmgen import Asm

NAME = 'adaLN_cond__ssm_conv_s4__mixer_channel_mlp__prompt'
def f32(x): return '0x%08x' % struct.unpack('<I', struct.pack('<f', x))[0]
LOG2E = 1.4426950408889634

KA = dict(u=0, Are=8, Aim=16, Bre=24, Bim=32, Cre=40, Cim=48, logdt=56, dskip=64, bx=72, w1=80, b1=88, w2=96, b2=104, c=112, wmod=120, out=128, dbg=136, ws=144)
SZ = dict(u=2359296, Are=147456, Aim=147456, Bre=147456, Bim=147456, Cre=147456, Cim=147456, logdt=1152, dskip=1152, w1=5308416, b1=9216, w2=5308416, b2=1152, c=1152, wmod=3981312, out=2359296, ws=268435456)
WS_MOD  = 0x0000000
WS_MODH = 0x0004000
WS_XT   = 0x0010000
WS_XNT  = 0x0250000
WS_X2T  = 0x0490000
WS_XF   = 0x06D0000
WS_KREV = 0x0910000
WS_W1F  = 0x0B50000
WS_W2F  = 0x1060000
WS_PART = 0x1570000
PSZ = 0x240000

def srd(a, base, ptr, size):
    a(f's_mov_b32 s{base}, s{ptr}')
    a(f's_and_b32 s{base+1}, s{ptr+1}, 0xffff')
    a(f's_mov_b32 s{base+2}, {size}')
    a(f's_mov_b32 s{base+3}, 0x20000')

def kstart(a, name):
    a.raw(f'.globl {name}')
    a.raw('.p2align 8')
    a.raw(f'.type {name},@function')
    a.raw(f'{name}:')
    a.reset_stats()

def kdesc(name, nv, ns):
    nv = max(nv, 1)
    acc = (nv + 3) // 4 * 4
    return f""".amdhsa_kernel {name}
  .amdhsa_next_free_vgpr {nv}
  .amdhsa_next_free_sgpr {ns}
  .amdhsa_accum_offset {acc}
  .amdhsa_group_segment_fixed_size 0
  .amdhsa_kernarg_size 152
  .amdhsa_user_sgpr_count 2
  .amdhsa_user_sgpr_kernarg_segment_ptr 1
  .amdhsa_system_sgpr_workgroup_id_x 1
.end_amdhsa_kernel
"""

def rb(a, dst, src):
    a(f'v_cvt_pk_bf16_f32 v{dst}, v{src}, v{src}')
    a(f'v_and_b32 v{dst}, 0xffff0000, v{dst}')

def unpack(a, lo, hi, src):
    a(f'v_lshlrev_b32 v{lo}, 16, v{src}')
    a(f'v_and_b32 v{hi}, 0xffff0000, v{src}')

def ln_scalars(a, mean, var, t):
    rb(a, mean, mean)
    rb(a, var, var)
    a(f'v_add_f32 v{var}, {f32(1e-5)}, v{var}')
    rb(a, var, var)
    a(f'v_sqrt_f32 v{var}, v{var}')
    rb(a, var, var)
    a(f'v_rcp_f32 v{var}, v{var}')

A_LN0, A_MOD0, A_KG0, A_WP0, A_END = 0, 64, 120, 696, 984
TSTR = 1184
A_LDS = 32 * TSTR

def tile_load(a, srdb, soff, rowstride):
    a('v_lshrrev_b32 v5, 3, v0')
    a('v_and_b32 v6, 7, v0')
    a(f's_mov_b32 s30, {rowstride}')
    a('v_mul_lo_u32 v1, v5, s30')
    a('v_lshl_add_u32 v1, v6, 4, v1')
    for i in range(9):
        a(f'buffer_load_dwordx4 v[{10+4*i}:{13+4*i}], v1, s[{srdb}:{srdb+3}], s{soff} offen offset:{128*i}')
    a(f'v_mul_u32_u24 v2, {TSTR}, v5')
    a('v_lshl_add_u32 v2, v6, 4, v2')

def gen_prep(a):
    name = 'prep_kernel'
    kstart(a, name)
    a(f's_cmp_ge_u32 s2, {A_END}')
    a('s_cbranch_scc1 A_done')
    a(f's_load_dwordx2 s[20:21], s[0:1], {KA["ws"]}')
    a(f's_cmp_ge_u32 s2, {A_WP0}')
    a('s_cbranch_scc1 A_wprep')
    a(f's_cmp_ge_u32 s2, {A_KG0}')
    a('s_cbranch_scc1 A_kgen')
    a(f's_cmp_ge_u32 s2, {A_MOD0}')
    a('s_cbranch_scc1 A_mod')
    a(f's_load_dwordx2 s[22:23], s[0:1], {KA["u"]}')
    a('s_mul_i32 s24, s2, 36864')
    a('s_waitcnt lgkmcnt(0)')
    srd(a, 4, 20, SZ['ws']); srd(a, 8, 22, SZ['u'])
    tile_load(a, 8, 24, 1152)
    a('v_and_b32 v7, 63, v0')
    a('v_lshrrev_b32 v8, 6, v0')
    a('v_lshrrev_b32 v9, 4, v7')
    a('v_bfe_u32 v46, v7, 2, 2')
    a('v_lshl_add_u32 v46, v9, 3, v46')
    a(f'v_mul_u32_u24 v3, {TSTR}, v46')
    a('v_and_b32 v46, 3, v7')
    a('v_lshl_add_u32 v3, v46, 3, v3')
    a('v_lshl_add_u32 v3, v8, 5, v3')
    a('v_and_b32 v46, 15, v7')
    a('v_lshl_add_u32 v46, v8, 4, v46')
    a('v_lshlrev_b32 v4, 12, v46')
    a('v_lshl_add_u32 v4, v9, 4, v4')
    for i in range(9):
        a(f's_waitcnt vmcnt({8-i})')
        a(f'ds_write_b128 v2, v[{10+4*i}:{13+4*i}] offset:{128*i}')
        for j in range(4):
            unpack(a, 50 + 8*i + 2*j, 51 + 8*i + 2*j, 10 + 4*i + j)
    a('v_add_f32 v46, v50, v51')
    a('v_add_f32 v47, v52, v53')
    for k in range(4, 72, 2):
        a(f'v_add_f32 v46, v46, v{50+k}')
        a(f'v_add_f32 v47, v47, v{51+k}')
    a('v_add_f32 v46, v46, v47')
    a('s_waitcnt lgkmcnt(0)')
    a('s_barrier')
    def tr_store(wsoff):
        for k in range(9):
            a(f'ds_read_b64_tr_b16 v[{10+4*k}:{11+4*k}], v3 offset:{128*k}')
            a(f'ds_read_b64_tr_b16 v[{12+4*k}:{13+4*k}], v3 offset:{128*k+4*TSTR}')
        a('s_lshl_b32 s25, s2, 6')
        a(f's_add_u32 s25, s25, {wsoff}')
        for k in range(9):
            a(f's_waitcnt lgkmcnt({min(15, 16-2*k)})')
            a(f'buffer_store_dwordx4 v[{10+4*k}:{13+4*k}], v4, s[4:7], s25 offen')
            if k < 8: a('s_add_u32 s25, s25, 262144')
    tr_store(WS_XT)
    def red8(r):
        a(f'v_add_f32_dpp v{r}, v{r}, v{r} quad_perm:[1,0,3,2] row_mask:0xf bank_mask:0xf')
        a(f'v_add_f32_dpp v{r}, v{r}, v{r} quad_perm:[2,3,0,1] row_mask:0xf bank_mask:0xf')
        a(f'v_add_f32_dpp v{r}, v{r}, v{r} row_half_mirror row_mask:0xf bank_mask:0xf')
    a('s_barrier')
    red8(46)
    a(f'v_mul_f32 v46, {f32(1/576)}, v46')
    a('v_mov_b32 v47, 0')
    a('v_mov_b32 v48, 0')
    for k in range(0, 72, 2):
        a(f'v_sub_f32 v122, v{50+k}, v46')
        a(f'v_sub_f32 v123, v{51+k}, v46')
        a('v_fmac_f32 v47, v122, v122')
        a('v_fmac_f32 v48, v123, v123')
    a('v_add_f32 v47, v47, v48')
    red8(47)
    a(f'v_mul_f32 v47, {f32(1/576)}, v47')
    ln_scalars(a, 46, 47, 48)
    for k in range(36):
        lo, hi = 50 + 2*k, 51 + 2*k
        a(f'v_sub_f32 v{lo}, v{lo}, v46')
        a(f'v_sub_f32 v{hi}, v{hi}, v46')
        a(f'v_cvt_pk_bf16_f32 v{lo}, v{lo}, v{hi}')
        a(f'v_and_b32 v{hi}, 0xffff0000, v{lo}')
        a(f'v_lshlrev_b32 v{lo}, 16, v{lo}')
        a(f'v_mul_f32 v{lo}, v{lo}, v47')
        a(f'v_mul_f32 v{hi}, v{hi}, v47')
        a(f'v_cvt_pk_bf16_f32 v{10+k}, v{lo}, v{hi}')
        if k % 4 == 3:
            i = k // 4
            a(f'ds_write_b128 v2, v[{10+4*i}:{13+4*i}] offset:{128*i}')
    a('s_waitcnt lgkmcnt(0)')
    a('s_barrier')
    tr_store(WS_XNT)
    a('s_endpgm')

    a.label('A_mod')
    a(f's_sub_u32 s3, s2, {A_MOD0}')
    a('s_cmp_ge_u32 s3, 54')
    a('s_cbranch_scc1 A_done')
    a(f's_load_dwordx2 s[22:23], s[0:1], {KA["wmod"]}')
    a(f's_load_dwordx2 s[24:25], s[0:1], {KA["c"]}')
    a('v_lshrrev_b32 v5, 3, v0')
    a('v_and_b32 v6, 7, v0')
    a('v_mul_u32_u24 v1, 6912, v5')
    a('v_lshl_add_u32 v1, v6, 4, v1')
    a('v_lshlrev_b32 v2, 1, v5')
    a('s_lshl_b32 s26, s3, 7')
    a('s_waitcnt lgkmcnt(0)')
    srd(a, 4, 20, SZ['ws']); srd(a, 8, 22, SZ['wmod']); srd(a, 12, 24, SZ['c'])
    for k in range(18):
        a(f'buffer_load_ushort v{90+k}, v2, s[12:15], 0 offen offset:{64*k}')
    for k in range(18):
        a(f'buffer_load_dwordx4 v[{10+4*k}:{13+4*k}], v1, s[8:11], s26 offen')
        if k < 17: a('s_add_u32 s26, s26, 221184')
    a('s_waitcnt vmcnt(18)')
    for k in range(18):
        a(f'v_lshlrev_b32 v{90+k}, 16, v{90+k}')
        a(f'v_mul_f32 v108, {f32(-LOG2E)}, v{90+k}')
        a('v_exp_f32 v108, v108')
        a('v_add_f32 v108, 1.0, v108')
        a('v_rcp_f32 v108, v108')
        a(f'v_mul_f32 v{90+k}, v{90+k}, v108')
        rb(a, 90 + k, 90 + k)
    for j in range(8): a(f'v_mov_b32 v{110+j}, 0')
    for k in range(18):
        a(f's_waitcnt vmcnt({17-k})')
        for j in range(4):
            unpack(a, 108, 109, 10 + 4*k + j)
            a(f'v_fmac_f32 v{110+2*j}, v108, v{90+k}')
            a(f'v_fmac_f32 v{111+2*j}, v109, v{90+k}')
    a('v_lshlrev_b32 v3, 8, v5')
    a('v_lshl_add_u32 v3, v6, 5, v3')
    a('ds_write_b128 v3, v[110:113]')
    a('ds_write_b128 v3, v[114:117] offset:16')
    a('s_waitcnt lgkmcnt(0)')
    a('s_barrier')
    a('v_readfirstlane_b32 s27, v0')
    a('s_cmp_ge_u32 s27, 64')
    a('s_cbranch_scc1 A_done')
    a('v_lshlrev_b32 v3, 2, v0')
    for k in range(32):
        a(f'ds_read_b32 v{10+k}, v3 offset:{256*k}')
    a('s_waitcnt lgkmcnt(0)')
    for st in (16, 8, 4, 2, 1):
        for k in range(st):
            a(f'v_add_f32 v{10+k}, v{10+k}, v{10+k+st}')
    rb(a, 10, 10)
    a('s_mov_b32 s28, 0')
    a('s_sub_u32 s29, s3, 9')
    a('s_cmp_lt_u32 s29, 9')
    a('s_cselect_b32 s28, 1.0, s28')
    a('s_sub_u32 s29, s3, 36')
    a('s_cmp_lt_u32 s29, 9')
    a('s_cselect_b32 s28, 1.0, s28')
    a('v_add_f32 v10, s28, v10')
    rb(a, 10, 10)
    a('s_lshl_b32 s26, s3, 8')
    a(f's_add_u32 s26, s26, {WS_MOD}')
    a('buffer_store_dword v10, v3, s[4:7], s26 offen')
    a('v_lshrrev_b32 v11, 16, v10')
    a('v_lshlrev_b32 v12, 1, v0')
    a('s_lshl_b32 s26, s3, 7')
    a(f's_add_u32 s26, s26, {WS_MODH}')
    a('buffer_store_short v11, v12, s[4:7], s26 offen')
    a('s_endpgm')

    a.label('A_kgen')
    PT, TB = 2048, 2048 + 4*3072
    a(f's_sub_u32 s3, s2, {A_KG0}')
    a('s_load_dwordx4 s[24:27], s[0:1], 8')
    a('s_load_dwordx4 s[28:31], s[0:1], 24')
    a('s_load_dwordx4 s[32:35], s[0:1], 40')
    a(f's_load_dwordx2 s[36:37], s[0:1], {KA["logdt"]}')
    a('v_and_b32 v7, 63, v0')
    a('v_lshrrev_b32 v8, 6, v0')
    a('v_lshrrev_b32 v9, 4, v7')
    a('v_and_b32 v6, 15, v7')
    a('v_and_b32 v1, 127, v0')
    a('v_lshlrev_b32 v1, 1, v1')
    a('s_lshl_b32 s38, s3, 8')
    a('s_lshl_b32 s39, s3, 1')
    a('v_mov_b32 v2, 0')
    a('s_waitcnt lgkmcnt(0)')
    srd(a, 4, 20, SZ['ws'])
    for j, p in enumerate((24, 26, 28, 30, 32, 34)):
        srd(a, 40 + 4*j, p, 147456)
    srd(a, 64, 36, 1152)
    a('buffer_load_ushort v16, v2, s[64:67], s39 offen')
    for j in range(6):
        a(f'buffer_load_ushort v{10+j}, v1, s[{40+4*j}:{43+4*j}], s38 offen')
    a('v_lshrrev_b32 v24, 3, v6')
    a('v_and_b32 v25, 7, v6')
    a('v_lshl_add_u32 v20, v24, 7, v25')
    a('v_bfe_u32 v24, v6, 2, 1')
    a('v_and_b32 v25, 3, v6')
    a('v_lshlrev_b32 v25, 1, v25')
    a('v_lshl_add_u32 v21, v24, 7, v25')
    a('v_add_u32 v21, 256, v21')
    a('v_bfe_u32 v24, v6, 1, 2')
    a('v_and_b32 v25, 1, v6')
    a('v_lshlrev_b32 v25, 2, v25')
    a('v_lshl_add_u32 v26, v24, 7, v25')
    a('v_add_u32 v26, 512, v26')
    a('v_cmp_lt_u32 vcc, 7, v6')
    a('v_cndmask_b32 v21, v21, v26, vcc')
    a('v_lshlrev_b32 v22, 7, v6')
    a('v_add_u32 v22, 1024, v22')
    a('v_lshlrev_b32 v23, 3, v6')
    for r in (20, 21, 22, 23): a(f'v_cvt_f32_u32 v{r}, v{r}')
    a('s_waitcnt vmcnt(0)')
    for j in range(7): a(f'v_lshlrev_b32 v{10+j}, 16, v{10+j}')
    a(f'v_mul_f32 v16, {f32(LOG2E)}, v16')
    a('v_exp_f32 v16, v16')
    rb(a, 16, 16)
    a('v_mul_f32 v28, v16, v10')
    a(f'v_mul_f32 v28, {f32(LOG2E)}, v28')
    a('v_mul_f32 v29, v16, v11')
    a(f'v_mul_f32 v29, {f32(1/(2*math.pi))}, v29')
    a('v_mul_f32 v12, v16, v12')
    a('v_mul_f32 v13, v16, v13')
    a('v_mul_f32 v30, v14, v12')
    a('v_fma_f32 v30, -v15, v13, v30')
    a('v_mul_f32 v31, v14, v13')
    a('v_fma_f32 v31, v15, v12, v31')
    a('v_lshlrev_b32 v1, 3, v1')
    a('ds_write_b128 v1, v[28:31]')
    a('v_lshl_add_u32 v3, v8, 5, v9')
    a('v_lshlrev_b32 v3, 4, v3')
    for r in range(40, 52): a(f'v_mov_b32 v{r}, 0')
    a('s_waitcnt lgkmcnt(0)')
    a('s_barrier')
    for st in range(8):
        a(f'ds_read_b128 v[{60+4*st}:{63+4*st}], v3 offset:{64*st}')
    for st in range(8):
        P = 60 + 4*st
        a(f's_waitcnt lgkmcnt({7-st})')
        o = 96 + 16 * (st & 1)
        for t in range(4):
            a(f'v_mul_f32 v{o+t}, v{P}, v{20+t}')
            a(f'v_mul_f32 v{o+8+t}, v{P+1}, v{20+t}')
        for t in range(4):
            a(f'v_exp_f32 v{o+t}, v{o+t}')
            a(f'v_fract_f32 v{o+8+t}, v{o+8+t}')
        for t in range(4):
            a(f'v_cos_f32 v{o+4+t}, v{o+8+t}')
            a(f'v_sin_f32 v{o+8+t}, v{o+8+t}')
        a(f'v_mul_f32 v{o+12}, v{P+2}, v{o+3}')
        a(f'v_mul_f32 v{o+13}, v{P+3}, v{o+3}')
        a(f'v_mul_f32 v{o+14}, v{o+12}, v{o+7}')
        a(f'v_mul_f32 v{o+15}, v{o+12}, v{o+11}')
        a(f'v_fma_f32 v{o+14}, -v{o+13}, v{o+11}, v{o+14}')
        a(f'v_fma_f32 v{o+15}, -v{o+13}, v{o+7}, -v{o+15}')
        for t in range(3):
            a(f'v_mul_f32 v{o+4+t}, v{o+t}, v{o+4+t}')
            a(f'v_mul_f32 v{o+8+t}, v{o+t}, v{o+8+t}')
        for t in range(3):
            a(f'v_mfma_f32_16x16x4_f32 v[{40+4*t}:{43+4*t}], v{o+4+t}, v{o+14}, v[{40+4*t}:{43+4*t}]')
        for t in range(3):
            a(f'v_mfma_f32_16x16x4_f32 v[{40+4*t}:{43+4*t}], v{o+8+t}, v{o+15}, v[{40+4*t}:{43+4*t}]')
    a('v_mul_u32_u24 v24, 3072, v8')
    a(f'v_add_u32 v24, {PT}, v24')
    a('v_lshrrev_b32 v25, 1, v9')
    a('v_and_b32 v26, 1, v9')
    a('v_lshlrev_b32 v27, 9, v25')
    a('v_lshl_add_u32 v27, v6, 5, v27')
    a('v_lshl_add_u32 v27, v26, 4, v27')
    a('v_add_u32 v27, v24, v27')
    a('v_lshlrev_b32 v28, 8, v26')
    a('v_lshl_add_u32 v29, v6, 4, v28')
    a('v_add_u32 v29, 1024, v29')
    a('v_add_u32 v30, 8, v29')
    a('v_lshl_add_u32 v31, v6, 3, v28')
    a('v_add_u32 v31, 1536, v31')
    a('v_add_u32 v32, 128, v31')
    a('v_cmp_lt_u32 vcc, 1, v9')
    a('v_cndmask_b32 v29, v29, v31, vcc')
    a('v_cndmask_b32 v30, v30, v32, vcc')
    a('v_add_u32 v29, v24, v29')
    a('v_add_u32 v30, v24, v30')
    a('v_lshlrev_b32 v31, 8, v9')
    a('v_lshl_add_u32 v31, v6, 2, v31')
    a('v_add_u32 v31, v24, v31')
    a('ds_write_b128 v27, v[40:43]')
    a('ds_write_b64 v29, v[44:45]')
    a('ds_write_b64 v30, v[46:47]')
    for r in range(4):
        a(f'ds_write_b32 v31, v{48+r} offset:{2048+64*r}')
    a('s_waitcnt lgkmcnt(0)')
    a('s_barrier')
    a('v_min_u32 v24, 191, v0')
    a('v_lshlrev_b32 v25, 4, v24')
    for w in range(4):
        a(f'ds_read_b128 v[{40+4*w}:{43+4*w}], v25 offset:{PT+3072*w}')
    a('v_lshlrev_b32 v26, 3, v0')
    a('v_sub_u32 v26, 2047, v26')
    for j in range(8):
        a(f'v_subrev_u32 v{60+j}, {j}, v26')
        a(f'v_cvt_f32_u32 v{70+j}, v{60+j}')
    for j in range(0, 8, 2):
        a(f'v_cvt_pk_bf16_f32 v{70+j}, v{70+j}, v{71+j}')
        a(f'v_lshrrev_b32 v{71+j}, 16, v{70+j}')
        a(f'v_and_b32 v{70+j}, 0xffff, v{70+j}')
    a('v_cmp_gt_u32 vcc, 240, v0')
    for j in range(8):
        a(f'v_subrev_u32 v{70+j}, 17024, v{70+j}')
        a(f'v_cndmask_b32 v{60+j}, v{60+j}, v{70+j}, vcc')
        a(f'v_lshlrev_b32 v{60+j}, 1, v{60+j}')
    a('s_waitcnt lgkmcnt(0)')
    for r in range(4):
        a(f'v_add_f32 v{40+r}, v{40+r}, v{44+r}')
        a(f'v_add_f32 v{48+r}, v{48+r}, v{52+r}')
        a(f'v_add_f32 v{40+r}, v{40+r}, v{48+r}')
    a('v_cvt_pk_bf16_f32 v40, v40, v41')
    a('v_cvt_pk_bf16_f32 v41, v42, v43')
    a('v_lshlrev_b32 v25, 3, v24')
    a(f'ds_write_b64 v25, v[40:41] offset:{TB}')
    a('s_waitcnt lgkmcnt(0)')
    a('s_barrier')
    for j in range(8):
        a(f'ds_read_u16 v{70+j}, v{60+j} offset:{TB}')
    a('s_lshl_b32 s38, s3, 12')
    a(f's_add_u32 s38, s38, {WS_KREV}')
    a('v_lshlrev_b32 v25, 4, v0')
    a('s_waitcnt lgkmcnt(0)')
    for j in range(4):
        a(f'v_lshl_or_b32 v{40+j}, v{71+2*j}, 16, v{70+2*j}')
    a('buffer_store_dwordx4 v[40:43], v25, s[4:7], s38 offen')
    a('s_endpgm')

    a.label('A_wprep')
    a(f's_sub_u32 s3, s2, {A_WP0}')
    a('s_and_b32 s26, s3, 7')
    a('s_lshr_b32 s27, s3, 3')
    a('s_cmp_ge_u32 s27, 18')
    a('s_cbranch_scc1 A_wp2')
    a(f's_load_dwordx2 s[22:23], s[0:1], {KA["w1"]}')
    a('s_mul_i32 s24, s27, 294912')
    a('s_mul_i32 s25, s26, 1152')
    a('s_add_u32 s24, s24, s25')
    a('s_mov_b32 s31, 9216')
    a(f's_mov_b32 s28, {WS_W1F}')
    a('s_branch A_wpc')
    a.label('A_wp2')
    a(f's_load_dwordx2 s[22:23], s[0:1], {KA["w2"]}')
    a('s_sub_u32 s27, s27, 18')
    a('s_mul_i32 s24, s26, 18')
    a('s_add_u32 s24, s24, s27')
    a('s_mul_i32 s24, s24, 36864')
    a('s_mov_b32 s31, 1152')
    a(f's_mov_b32 s28, {WS_W2F}')
    a.label('A_wpc')
    a('s_mul_i32 s29, s26, 663552')
    a('s_add_u32 s28, s28, s29')
    a('s_mul_i32 s29, s27, 3072')
    a('s_add_u32 s28, s28, s29')
    a('s_waitcnt lgkmcnt(0)')
    srd(a, 4, 20, SZ['ws']); srd(a, 8, 22, SZ['w1'])
    a('v_lshrrev_b32 v5, 3, v0')
    a('v_and_b32 v6, 7, v0')
    a('v_mul_lo_u32 v1, v5, s31')
    a('v_lshl_add_u32 v1, v6, 4, v1')
    for i in range(9):
        a(f'buffer_load_dwordx4 v[{10+4*i}:{13+4*i}], v1, s[8:11], s24 offen offset:{128*i}')
    a(f'v_mul_u32_u24 v2, {TSTR}, v5')
    a('v_lshl_add_u32 v2, v6, 4, v2')
    a('v_and_b32 v7, 63, v0')
    a('v_lshrrev_b32 v8, 6, v0')
    a('v_lshrrev_b32 v9, 2, v7')
    a(f'v_mul_u32_u24 v3, {TSTR}, v9')
    a('v_and_b32 v46, 3, v7')
    a('v_lshl_add_u32 v3, v46, 3, v3')
    a('v_mul_u32_u24 v46, 288, v8')
    a('v_add_u32 v3, v3, v46')
    a('v_mul_u32_u24 v4, 165888, v8')
    a('v_lshl_add_u32 v4, v7, 4, v4')
    for i in range(9):
        a(f's_waitcnt vmcnt({8-i})')
        a(f'ds_write_b128 v2, v[{10+4*i}:{13+4*i}] offset:{128*i}')
    a('s_waitcnt lgkmcnt(0)')
    a('s_barrier')
    for k in range(9):
        a(f'ds_read_b64_tr_b16 v[{10+4*k}:{11+4*k}], v3 offset:{32*k}')
        a(f'ds_read_b64_tr_b16 v[{12+4*k}:{13+4*k}], v3 offset:{32*k+16*TSTR}')
    for k in range(9):
        a(f's_waitcnt lgkmcnt({min(15, 16-2*k)})')
        a(f'buffer_store_dwordx4 v[{10+4*k}:{13+4*k}], v4, s[4:7], s28 offen offset:{1024*(k%3)}')
        if k % 3 == 2 and k < 8: a('s_add_u32 s28, s28, 55296')
    a.label('A_done')
    a('s_endpgm')
    return name, a.maxv + 1, a.maxs + 1

B_LDS = 4608 + 4096
def gen_conv(a):
    name = 'conv_kernel'
    kstart(a, name)
    a('s_cmp_ge_u32 s2, 576')
    a('s_cbranch_scc1 B_done')
    a(f's_load_dwordx2 s[20:21], s[0:1], {KA["ws"]}')
    a(f's_load_dwordx2 s[22:23], s[0:1], {KA["dskip"]}')
    a('v_lshlrev_b32 v1, 4, v0')
    a('v_and_b32 v6, 15, v0')
    a('v_lshrrev_b32 v9, 4, v0')
    a('s_lshl_b32 s3, s2, 12')
    a('s_lshl_b32 s24, s2, 2')
    a('s_lshl_b32 s25, s2, 1')
    a('s_and_b32 s25, s25, 0xfffffffc')
    a('s_waitcnt lgkmcnt(0)')
    srd(a, 4, 20, SZ['ws'])
    a(f's_add_u32 s26, s3, {WS_XNT}')
    for i in range(4):
        a(f'buffer_load_dwordx4 v[{10+4*i}:{13+4*i}], v1, s[4:7], s26 offen offset:{1024*i}')
    a(f's_add_u32 s27, s3, {WS_KREV}')
    a('s_mov_b32 m0, 0')
    for i in range(4):
        a(f'buffer_load_dwordx4 v1, s[4:7], s27 offen offset:{1024*i} lds')
    a('s_load_dword s30, s[20:21], s24 offset:%d' % (WS_MOD))
    a('s_load_dword s31, s[20:21], s24 offset:%d' % (WS_MOD + 2304))
    a('s_load_dword s32, s[20:21], s24 offset:%d' % (WS_MOD + 4608))
    a('s_load_dword s33, s[22:23], s25')
    a('v_lshlrev_b32 v2, 5, v6')
    a('v_lshl_add_u32 v2, v9, 3, v2')
    a(f's_add_u32 s28, s3, {WS_XT}')
    for al in range(8):
        a(f'buffer_load_dwordx2 v[{30+2*al}:{31+2*al}], v2, s[4:7], s28 offen offset:{512*al}')
    a('v_mov_b32 v46, 0')
    a('v_mov_b32 v47, 0')
    a('v_lshlrev_b32 v3, 3, v0')
    a('ds_write_b64 v3, v[46:47] offset:4096')
    a('v_lshlrev_b32 v4, 3, v9')
    a('v_sub_u32 v4, v4, v6')
    a('v_add_u32 v4, 15, v4')
    a('v_lshlrev_b32 v4, 1, v4')
    a('v_lshlrev_b32 v5, 5, v6')
    a('v_lshl_add_u32 v5, v9, 4, v5')
    a('v_add_u32 v5, 4128, v5')
    a('s_waitcnt lgkmcnt(0)')
    a('s_bitcmp1_b32 s2, 0')
    a('s_cselect_b32 s34, 0, 16')
    a('s_lshl_b32 s33, s33, s34')
    a('s_and_b32 s33, s33, 0xffff0000')
    a('v_mov_b32 v48, s30')
    for i in range(4):
        a(f's_waitcnt vmcnt({15-i})')
        for j in range(4):
            r = 10 + 4*i + j
            unpack(a, 46, 47, r)
            a('v_fma_f32 v46, v46, s31, v48')
            a('v_fma_f32 v47, v47, s31, v48')
            a(f'v_cvt_pk_bf16_f32 v{r}, v46, v47')
        a(f'ds_write_b128 v1, v[{10+4*i}:{13+4*i}] offset:{4608+1024*i}')
    a('s_waitcnt vmcnt(8) lgkmcnt(0)')
    ACC, BF, AF = 50, 82, 146
    def rd(s0):
        buf = s0 & 1
        for j in range(8):
            a(f'ds_read_b128 v[{AF+32*buf+4*j}:{AF+32*buf+4*j+3}], v4 offset:{64*(63-(s0+8*j))}')
            a(f'ds_read_b128 v[{BF+32*buf+4*j}:{BF+32*buf+4*j+3}], v5 offset:{512*j+64*(7-s0)}')
    rd(0)
    for s0 in range(8):
        buf = s0 & 1
        a('s_waitcnt lgkmcnt(0)')
        if s0 < 7: rd(s0 + 1)
        for i in range(8):
            for al in range(i, 8):
                c = f'v[{ACC+4*al}:{ACC+4*al+3}]'
                cin = '0' if (s0 == 0 and i == 0) else c
                A = AF + 32*buf + 4*i; B = BF + 32*buf + 4*(al - i)
                a(f'v_mfma_f32_16x16x32_bf16 {c}, v[{A}:{A+3}], v[{B}:{B+3}], {cin}')
    for al in range(8):
        a(f'ds_read_b64 v[{10+2*al}:{11+2*al}], v2 offset:{4608+512*al}')
    a(f's_add_u32 s28, s3, {WS_X2T}')
    a('s_waitcnt vmcnt(0) lgkmcnt(0)')
    for al in range(8):
        for hh in range(2):
            unpack(a, 46, 47, 10 + 2*al + hh)
            unpack(a, 48, 49, 30 + 2*al + hh)
            y0, y1 = ACC + 4*al + 2*hh, ACC + 4*al + 2*hh + 1
            a(f'v_fma_f32 v46, v46, s33, v{y0}')
            a(f'v_fma_f32 v47, v47, s33, v{y1}')
            a('v_fma_f32 v46, v46, s32, v48')
            a('v_fma_f32 v47, v47, s32, v49')
            a(f'v_cvt_pk_bf16_f32 v{30+2*al+hh}, v46, v47')
        a(f'buffer_store_dwordx2 v[{30+2*al}:{31+2*al}], v2, s[4:7], s28 offen offset:{512*al}')
    a.label('B_done')
    a('s_endpgm')
    return name, a.maxv + 1, a.maxs + 1

YF, HF, ST = 0, 73728, 147456
C_LDS = ST + 2*1536 + 64
def gen_mlp(a):
    name = 'mlp_kernel'
    kstart(a, name)
    ACC, BFR, RING = 8, 56, 88
    a('s_cmp_ge_u32 s2, 256')
    a('s_cbranch_scc1 C_done')
    a(f's_load_dwordx2 s[20:21], s[0:1], {KA["ws"]}')
    a(f's_load_dwordx2 s[22:23], s[0:1], {KA["b1"]}')
    a('v_lshrrev_b32 v7, 6, v0')
    a('v_and_b32 v0, 63, v0')
    a('v_readfirstlane_b32 s3, v7')
    a('s_and_b32 s24, s2, 7')
    a('s_lshr_b32 s25, s2, 3')
    a('v_lshlrev_b32 v1, 4, v0')
    a('s_and_b32 s26, s3, 3')
    a('s_lshr_b32 s27, s3, 2')
    a('v_lshrrev_b32 v6, 3, v0')
    a('v_lshlrev_b32 v6, 12, v6')
    a('v_lshrrev_b32 v7, 4, v0')
    a('v_lshlrev_b32 v2, 1, v7')
    a('v_and_b32 v3, 7, v0')
    a('v_xor_b32 v2, v2, v3')
    a('v_lshl_add_u32 v6, v2, 4, v6')
    a('s_lshl_b32 s28, s25, 7')
    a('s_mul_i32 s29, s3, 196608')
    a('s_add_u32 s28, s28, s29')
    a(f's_add_u32 s28, s28, {WS_X2T}')
    a('s_mul_i32 s29, s3, 6144')
    a(f's_add_u32 s29, s29, {HF}')
    a('s_waitcnt lgkmcnt(0)')
    srd(a, 4, 20, SZ['ws']); srd(a, 8, 22, SZ['b1'])
    for p in range(6):
        a('s_mov_b32 m0, s29')
        a('buffer_load_dwordx4 v6, s[4:7], s28 offen lds')
        if p < 5:
            a('s_add_u32 s28, s28, 32768')
            a('s_add_u32 s29, s29, 1024')
    ppairs = [80, 82, 84, 86] + list(range(124, 164, 2))
    cbp, sbp = ppairs[:12], ppairs[12:]
    a('v_lshlrev_b32 v2, 3, v7')
    a('s_mul_i32 s30, s27, 384')
    a(f's_add_u32 s30, s30, {WS_MODH+3*1152}')
    for T in range(12):
        a(f'buffer_load_dwordx2 v[{cbp[T]}:{cbp[T]+1}], v2, s[4:7], s30 offen offset:{1152+32*T}')
        a(f'buffer_load_dwordx2 v[{sbp[T]}:{sbp[T]+1}], v2, s[4:7], s30 offen offset:{32*T}')
    a('s_mul_i32 s31, s24, 12')
    a('s_add_u32 s31, s31, s3')
    a('s_mul_i32 s31, s31, 55296')
    a(f's_add_u32 s40, s31, {WS_W1F}')
    a(f's_add_u32 s41, s31, {WS_W2F}')
    state = {'n': 0}
    def wload0(step):
        if step == 18: a('s_mov_b32 s40, s41')
        base = RING + 12 * (step % 5)
        for i in range(3):
            a(f'buffer_load_dwordx4 v[{base+4*i}:{base+4*i+3}], v1, s[4:7], s40 offen offset:{1024*i}')
        a('s_add_u32 s40, s40, 3072')
    for st in range(3): wload0(st)
    a('v_lshrrev_b32 v2, 2, v0')
    a('v_lshrrev_b32 v3, 1, v2')
    a('v_and_b32 v3, 3, v3')
    a('v_xor_b32 v3, s26, v3')
    a('v_lshlrev_b32 v3, 5, v3')
    a('v_lshl_add_u32 v3, v2, 7, v3')
    a('v_and_b32 v2, 3, v0')
    a('v_lshl_add_u32 v3, v2, 3, v3')
    a('s_mul_i32 s31, s27, 24576')
    a(f's_add_u32 s31, s31, {HF}')
    a('v_add_u32 v3, s31, v3')
    a('v_and_b32 v4, 15, v0')
    a('s_lshl_b32 s31, s26, 7')
    a(f's_add_u32 s31, s31, {ST}')
    a('v_lshlrev_b32 v4, 3, v4')
    a('v_add_u32 v4, s31, v4')
    a('s_lshl_b32 s31, s27, 9')
    a('v_add_u32 v5, s31, v4')
    a('s_waitcnt vmcnt(33)')
    a('s_barrier')
    RAW = 56
    for T in range(12):
        a(f'ds_read_b64_tr_b16 v[{RAW+2*T}:{RAW+2*T+1}], v3 offset:{2048*T}')
    a('s_mul_i32 s32, s25, 18')
    a('s_mul_i32 s33, s27, 6')
    a('s_add_u32 s32, s32, s33')
    a('s_lshl_b32 s32, s32, 2')
    a('s_add_u32 s32, s32, s26')
    a('s_lshl_b32 s32, s32, 10')
    a(f's_add_u32 s32, s32, {WS_XF}')
    a('s_waitcnt lgkmcnt(0)')
    a('s_cmp_lg_u32 s24, 0')
    a('s_cbranch_scc1 C_noxf')
    for k in range(6):
        a(f'buffer_store_dwordx4 v[{RAW+4*k}:{RAW+4*k+3}], v1, s[4:7], s32 offen')
        if k < 5: a('s_add_u32 s32, s32, 4096')
    a.label('C_noxf')
    a('s_mov_b32 s33, 0x3f803f80')
    a('v_mov_b32 v164, 0')
    a('v_mov_b32 v165, 0')
    for k in range(24):
        a(f'v_dot2_f32_bf16 v164, v{RAW+k}, s33, v164')
    for k in range(24):
        a(f'v_dot2_f32_bf16 v165, v{RAW+k}, v{RAW+k}, v165')
    for k in range(24):
        unpack(a, ACC + 2*k, ACC + 2*k + 1, RAW + k)
    def reduce_stats(rnd):
        for sw in ('v_permlane16_swap_b32', 'v_permlane32_swap_b32'):
            a('v_mov_b32 v166, v164')
            a('v_mov_b32 v167, v165')
            a(f'{sw} v164, v166')
            a(f'{sw} v165, v167')
            a('v_add_f32 v164, v164, v166')
            a('v_add_f32 v165, v165, v167')
        a(f'ds_write_b64 v5, v[164:165] offset:{1536*rnd}')
        a('s_waitcnt lgkmcnt(0)')
        a('s_barrier')
        for t in range(3):
            a(f'ds_read_b64 v[{RAW+2*t}:{RAW+2*t+1}], v4 offset:{1536*rnd+512*t}')
        a('s_waitcnt lgkmcnt(0)')
        a(f'v_add_f32 v164, v{RAW}, v{RAW+2}')
        a(f'v_add_f32 v165, v{RAW+1}, v{RAW+3}')
        a(f'v_add_f32 v164, v164, v{RAW+4}')
        a(f'v_add_f32 v165, v165, v{RAW+5}')
        a(f'v_mul_f32 v164, {f32(1/576)}, v164')
        a(f'v_mul_f32 v165, {f32(1/576)}, v165')
        a('v_fma_f32 v165, -v164, v164, v165')
        a('v_max_f32 v165, 0, v165')
        ln_scalars(a, 164, 165, 166)
        a('v_mul_f32 v164, v164, v165')
    reduce_stats(0)
    a('v_mov_b32 v6, v164')
    a('v_mov_b32 v7, v165')
    a('v_mov_b32 v164, 0')
    a('v_mov_b32 v165, 0')
    a('s_waitcnt vmcnt(9)')
    for T in range(12):
        for hh in range(2):
            unpack(a, RAW, RAW + 1, cbp[T] + hh)
            unpack(a, RAW + 2, RAW + 3, sbp[T] + hh)
            for e in range(2):
                x = ACC + 4*T + 2*hh + e
                a(f'v_fma_f32 v{x}, v{x}, v7, -v6')
                a(f'v_fma_f32 v{x}, v{x}, v{RAW+e}, v{RAW+2+e}')
                a(f'v_add_f32 v164, v164, v{x}')
                a(f'v_fmac_f32 v165, v{x}, v{x}')
    a('v_lshrrev_b32 v2, 4, v0')
    a('v_lshlrev_b32 v2, 3, v2')
    a('s_mul_i32 s31, s24, 1152')
    a('s_mul_i32 s33, s3, 96')
    a('s_add_u32 s31, s31, s33')
    for i in range(3):
        a(f'buffer_load_dwordx2 v[{80+2*i}:{81+2*i}], v2, s[8:11], s31 offen offset:{32*i}')
    for st in range(3, 5): wload0(st)
    reduce_stats(1)
    a('s_mul_i32 s31, s27, 24576')
    a('s_lshl_b32 s33, s26, 10')
    a('s_add_u32 s31, s31, s33')
    a('v_add_u32 v2, s31, v1')
    for k in range(6):
        for j in range(4):
            x = ACC + 8*k + 2*j
            a(f'v_fma_f32 v{x}, v{x}, v165, -v164')
            a(f'v_fma_f32 v{x+1}, v{x+1}, v165, -v164')
            a(f'v_cvt_pk_bf16_f32 v{RAW+4*(k&1)+j}, v{x}, v{x+1}')
        a(f'ds_write_b128 v2, v[{RAW+4*(k&1)}:{RAW+4*(k&1)+3}] offset:{YF+4096*k}')
    BIAS = 148
    a('s_waitcnt vmcnt(6)')
    for i in range(3):
        unpack(a, BIAS + 4*i, BIAS + 4*i + 1, 80 + 2*i)
        unpack(a, BIAS + 4*i + 2, BIAS + 4*i + 3, 81 + 2*i)
    a(f'v_add_u32 v3, 65536, v1')
    a(f'v_add_u32 v4, {HF}, v1')
    a(f'v_add_u32 v5, {HF+65536}, v1')
    a('s_waitcnt lgkmcnt(0)')
    a('s_barrier')
    def bread(ph, kk):
        buf = kk & 1
        lo, hi = (1, 3) if ph == 0 else (4, 5)
        for tt in range(4):
            off = kk * 4096 + tt * 1024
            v = lo if off < 65536 else hi
            a(f'ds_read_b128 v[{BFR+16*buf+4*tt}:{BFR+16*buf+4*tt+3}], v{v} offset:{off % 65536}')
    def phase2(ph):
        bread(ph, 0)
        for kk in range(18):
            step = 18*ph + kk
            if kk < 17:
                bread(ph, kk + 1)
                a('s_waitcnt lgkmcnt(4)')
            else:
                a('s_waitcnt lgkmcnt(0)')
            rem = min(4, 35 - step)
            a(f's_waitcnt vmcnt({3*rem})')
            base = RING + 12 * (step % 5); buf = kk & 1
            pre = step + 5 <= 35
            if pre and step + 5 == 18: a('s_mov_b32 s40, s41')
            for i in range(3):
                for tt in range(4):
                    c = f'v[{ACC+16*i+4*tt}:{ACC+16*i+4*tt+3}]'
                    if kk == 0: cin = f'v[{BIAS+4*i}:{BIAS+4*i+3}]' if ph == 0 else '0'
                    else: cin = c
                    B = BFR + 16*buf + 4*tt
                    a(f'v_mfma_f32_16x16x32_bf16 {c}, v[{base+4*i}:{base+4*i+3}], v[{B}:{B+3}], {cin}')
                if pre:
                    a(f'buffer_load_dwordx4 v[{base+4*i}:{base+4*i+3}], v1, s[4:7], s40 offen offset:{1024*i}')
            if pre: a('s_add_u32 s40, s40, 3072')
    phase2(0)
    c0 = -2 * 0.7978845608028654 * LOG2E
    c1 = c0 * 0.044715
    a(f's_mov_b32 s34, {f32(c1)}')
    a(f'v_mov_b32 v160, {f32(c0)}')
    PK = BFR
    for tt in range(4):
        for i in range(3):
            xs = [ACC + 16*i + 4*tt + r for r in range(4)]
            for r, x in enumerate(xs):
                a(f'v_mul_f32 v{148+r}, v{x}, v{x}')
            for r, x in enumerate(xs):
                a(f'v_fma_f32 v{148+r}, v{148+r}, s34, v160')
            for r, x in enumerate(xs):
                a(f'v_mul_f32 v{148+r}, v{148+r}, v{x}')
            for r in range(4): a(f'v_exp_f32 v{148+r}, v{148+r}')
            for r in range(4): a(f'v_add_f32 v{148+r}, 1.0, v{148+r}')
            for r in range(4): a(f'v_rcp_f32 v{148+r}, v{148+r}')
            for r, x in enumerate(xs):
                a(f'v_mul_f32 v{148+r}, v{148+r}, v{x}')
            a(f'v_cvt_pk_bf16_f32 v{PK+6*tt+2*i}, v148, v149')
            a(f'v_cvt_pk_bf16_f32 v{PK+6*tt+2*i+1}, v150, v151')
    def frag_out(emit128, emit64):
        a('s_bitcmp1_b32 s3, 0')
        lo, le = a.newlabel('C_odd'), a.newlabel('C_end')
        a(f's_cbranch_scc1 {lo}')
        for tt in range(4):
            emit128(PK + 6*tt, 0, tt)
            emit64(PK + 6*tt + 4, 1, tt, 0)
        a(f's_branch {le}')
        a.label(lo)
        for tt in range(4):
            emit64(PK + 6*tt, 0, tt, 8)
            emit128(PK + 6*tt + 2, 1, tt)
        a.label(le)
    a('s_mul_i32 s35, s3, 3')
    a('s_lshr_b32 s35, s35, 1')
    a('s_lshl_b32 s36, s35, 12')
    a('v_add_u32 v2, s36, v4')
    frag_out(lambda r, dk, tt: a(f'ds_write_b128 v2, v[{r}:{r+3}] offset:{4096*dk+1024*tt}'),
             lambda r, dk, tt, h: a(f'ds_write_b64 v2, v[{r}:{r+1}] offset:{4096*dk+1024*tt+h}'))
    a('s_waitcnt lgkmcnt(0)')
    a('s_barrier')
    phase2(1)
    for tt in range(4):
        for i in range(3):
            x = ACC + 16*i + 4*tt
            a(f'v_cvt_pk_bf16_f32 v{PK+6*tt+2*i}, v{x}, v{x+1}')
            a(f'v_cvt_pk_bf16_f32 v{PK+6*tt+2*i+1}, v{x+2}, v{x+3}')
    a(f's_mul_i32 s36, s24, {PSZ}')
    a('s_mul_i32 s37, s25, 18')
    a('s_add_u32 s37, s37, s35')
    a('s_lshl_b32 s37, s37, 12')
    a('s_add_u32 s36, s36, s37')
    a(f's_add_u32 s36, s36, {WS_PART}')
    a('s_add_u32 s37, s36, 4096')
    frag_out(lambda r, dk, tt: a(f'buffer_store_dwordx4 v[{r}:{r+3}], v1, s[4:7], s{36+dk} offen offset:{1024*tt}'),
             lambda r, dk, tt, h: a(f'buffer_store_dwordx2 v[{r}:{r+1}], v1, s[4:7], s{36+dk} offen offset:{1024*tt+h}'))
    a.label('C_done')
    a('s_endpgm')
    return name, a.maxv + 1, a.maxs + 1

def gen_final(a):
    name = 'final_kernel'
    kstart(a, name)
    a('s_cmp_ge_u32 s2, 576')
    a('s_cbranch_scc1 D_done')
    a(f's_load_dwordx2 s[20:21], s[0:1], {KA["ws"]}')
    a(f's_load_dwordx2 s[22:23], s[0:1], {KA["b2"]}')
    a(f's_load_dwordx2 s[24:25], s[0:1], {KA["out"]}')
    a('v_lshlrev_b32 v1, 4, v0')
    a('s_lshl_b32 s3, s2, 12')
    a(f's_mul_hi_u32 s26, s2, {(2**32 + 17) // 18}')
    a('s_mul_i32 s27, s26, 18')
    a('s_sub_u32 s27, s2, s27')
    a('v_bfe_u32 v7, v0, 4, 2')
    a('s_waitcnt lgkmcnt(0)')
    srd(a, 4, 20, SZ['ws']); srd(a, 8, 22, SZ['b2']); srd(a, 12, 24, SZ['out'])
    a(f's_add_u32 s28, s3, {WS_PART}')
    for s in range(8):
        a(f'buffer_load_dwordx4 v[{10+4*s}:{13+4*s}], v1, s[4:7], s28 offen')
        if s < 7: a(f's_add_u32 s28, s28, {PSZ}')
    a(f's_add_u32 s28, s3, {WS_XF}')
    a('buffer_load_dwordx4 v[42:45], v1, s[4:7], s28 offen')
    a('v_lshlrev_b32 v2, 4, v7')
    a('s_lshl_b32 s29, s27, 7')
    a(f's_add_u32 s29, s29, {WS_MOD + 5*2304}')
    a('buffer_load_dwordx4 v[46:49], v2, s[4:7], s29 offen')
    a('buffer_load_dwordx4 v[50:53], v2, s[4:7], s29 offen offset:64')
    a('v_lshlrev_b32 v3, 3, v7')
    a('s_lshl_b32 s29, s27, 6')
    a('buffer_load_dwordx2 v[54:55], v3, s[8:11], s29 offen')
    a('buffer_load_dwordx2 v[56:57], v3, s[8:11], s29 offen offset:32')
    a('v_lshrrev_b32 v4, 6, v0')
    a('v_and_b32 v5, 15, v0')
    a('v_lshl_add_u32 v4, v4, 4, v5')
    a('v_mul_u32_u24 v4, 1152, v4')
    a('v_and_b32 v5, 1, v7')
    a('v_lshl_add_u32 v4, v5, 5, v4')
    a('v_lshrrev_b32 v5, 1, v7')
    a('v_lshl_add_u32 v4, v5, 4, v4')
    a('s_mul_i32 s30, s26, 73728')
    a('s_lshl_b32 s29, s27, 6')
    a('s_add_u32 s30, s30, s29')
    S = 60
    a('s_waitcnt vmcnt(12)')
    for j in range(4): unpack(a, S + 2*j, S + 2*j + 1, 10 + j)
    for s in range(1, 8):
        a(f's_waitcnt vmcnt({12-s})')
        for j in range(4):
            unpack(a, 68, 69, 10 + 4*s + j)
            a(f'v_add_f32 v{S+2*j}, v{S+2*j}, v68')
            a(f'v_add_f32 v{S+2*j+1}, v{S+2*j+1}, v69')
    a('s_waitcnt vmcnt(0)')
    for j in range(4):
        x0, x1 = S + 2*j, S + 2*j + 1
        a(f'v_cvt_pk_bf16_f32 v70, v{x0}, v{x1}')
        unpack(a, x0, x1, 70)
        unpack(a, 68, 69, 54 + j)
        a(f'v_add_f32 v{x0}, v{x0}, v68')
        a(f'v_add_f32 v{x1}, v{x1}, v69')
        a(f'v_cvt_pk_bf16_f32 v70, v{x0}, v{x1}')
        unpack(a, x0, x1, 70)
        a(f'v_mul_f32 v{x0}, v{x0}, v{46+2*j}')
        a(f'v_mul_f32 v{x1}, v{x1}, v{47+2*j}')
        a(f'v_cvt_pk_bf16_f32 v70, v{x0}, v{x1}')
        unpack(a, x0, x1, 70)
        unpack(a, 68, 69, 42 + j)
        a(f'v_add_f32 v{x0}, v{x0}, v68')
        a(f'v_add_f32 v{x1}, v{x1}, v69')
        a(f'v_cvt_pk_bf16_f32 v{72+j}, v{x0}, v{x1}')
    a('v_permlane16_swap_b32 v72, v74')
    a('v_permlane16_swap_b32 v73, v75')
    a('buffer_store_dwordx4 v[72:75], v4, s[12:15], s30 offen')
    a.label('D_done')
    a('s_endpgm')
    return name, a.maxv + 1, a.maxs + 1

def main(out):
    a = Asm()
    hdr = open(f'cdna_kernels/{NAME}.s.ref').read().split('\n')
    head = [l for l in hdr if l.startswith(';') and '@launch' not in l and 'Override' not in l and 'grid=ceil' not in l]
    ks = []
    body = Asm()
    for g in (gen_prep, gen_conv, gen_mlp, gen_final):
        ks.append(g(body))
    launches = [
        f'; @launch kernel=prep_kernel grid=({A_END},1,1) block=(256,1,1) lds={A_LDS}',
        f'; @launch kernel=conv_kernel grid=(576,1,1) block=(64,1,1) lds={B_LDS}',
        f'; @launch kernel=mlp_kernel grid=(256,1,1) block=(768,1,1) lds={C_LDS}',
        f'; @launch kernel=final_kernel grid=(576,1,1) block=(256,1,1) lds=0',
    ]
    txt = '\n'.join(head + launches) + '\n.amdgcn_target "amdgcn-amd-amdhsa--gfx950"\n.text\n' + body.text()
    txt += '.section .rodata,"a"\n'
    for n, nv, ns in ks:
        txt += '.p2align 6\n' + kdesc(n, nv, max(ns, 16))
        print(n, 'vgpr', nv, 'sgpr', ns, file=sys.stderr)
    print('nops', body.nops, 'lines', len(body.lines), file=sys.stderr)
    open(out, 'w').write(txt)

if __name__ == '__main__':
    main(sys.argv[1] if len(sys.argv) > 1 else f'cdna_kernels/{NAME}.s')
```

```python
import sys, struct, math
sys.path.insert(0, 'dev')
from asmgen import Asm

NAME = 'adaLN_cond__ssm_conv_s4__mixer_channel_mlp__prompt'
def f32(x): return '0x%08x' % struct.unpack('<I', struct.pack('<f', x))[0]
LOG2E = 1.4426950408889634

KA = dict(u=0, Are=8, Aim=16, Bre=24, Bim=32, Cre=40, Cim=48, logdt=56, dskip=64, bx=72, w1=80, b1=88, w2=96, b2=104, c=112, wmod=120, out=128, dbg=136, ws=144)
SZ = dict(u=2359296, Are=147456, Aim=147456, Bre=147456, Bim=147456, Cre=147456, Cim=147456, logdt=1152, dskip=1152, w1=5308416, b1=9216, w2=5308416, b2=1152, c=1152, wmod=3981312, out=2359296, ws=268435456)
WS_MOD  = 0x0000000
WS_MODH = 0x0004000
WS_XT   = 0x0010000
WS_XNT  = 0x0250000
WS_X2T  = 0x0490000
WS_XF   = 0x06D0000
WS_KREV = 0x0910000
WS_W1F  = 0x0B50000
WS_W2F  = 0x1060000
WS_PART = 0x1570000
PSZ = 0x240000

def srd(a, base, ptr, size):
    a(f's_mov_b32 s{base}, s{ptr}')
    a(f's_and_b32 s{base+1}, s{ptr+1}, 0xffff')
    a(f's_mov_b32 s{base+2}, {size}')
    a(f's_mov_b32 s{base+3}, 0x20000')

def kstart(a, name):
    a.raw(f'.globl {name}')
    a.raw('.p2align 8')
    a.raw(f'.type {name},@function')
    a.raw(f'{name}:')
    a.reset_stats()

def kdesc(name, nv, ns):
    nv = max(nv, 1)
    acc = (nv + 3) // 4 * 4
    return f""".amdhsa_kernel {name}
  .amdhsa_next_free_vgpr {nv}
  .amdhsa_next_free_sgpr {ns}
  .amdhsa_accum_offset {acc}
  .amdhsa_group_segment_fixed_size 0
  .amdhsa_kernarg_size 152
  .amdhsa_user_sgpr_count 2
  .amdhsa_user_sgpr_kernarg_segment_ptr 1
  .amdhsa_system_sgpr_workgroup_id_x 1
.end_amdhsa_kernel
"""

def rb(a, dst, src):
    a(f'v_cvt_pk_bf16_f32 v{dst}, v{src}, v{src}')
    a(f'v_and_b32 v{dst}, 0xffff0000, v{dst}')

def unpack(a, lo, hi, src):
    a(f'v_lshlrev_b32 v{lo}, 16, v{src}')
    a(f'v_and_b32 v{hi}, 0xffff0000, v{src}')

def ln_scalars(a, mean, var, t):
    rb(a, mean, mean)
    rb(a, var, var)
    a(f'v_add_f32 v{var}, {f32(1e-5)}, v{var}')
    rb(a, var, var)
    a(f'v_sqrt_f32 v{var}, v{var}')
    rb(a, var, var)
    a(f'v_rcp_f32 v{var}, v{var}')

import os
PROF = os.environ.get('PROF', '0') == '1'
WS_PROF = 0x2800000
class Stamps:
    def __init__(self, a, kidx): self.a = a; self.n = 0; self.n0 = 0; self.kidx = kidx
    def __call__(self):
        if not PROF: return
        a = self.a
        a('s_waitcnt lgkmcnt(0)')
        a('s_memtime s[78:79]')
        a('s_waitcnt lgkmcnt(0)')
        a(f's_mov_b32 s{80+self.n}, s78')
        if self.n == 0:
            a('s_memrealtime s[78:79]')
            a('s_waitcnt lgkmcnt(0)')
            a('s_mov_b32 s76, s78')
        self.n += 1
    def dump(self, waves_per_wg, wave_sgpr=None, vt=(2, 3)):
        if not PROF: return
        a = self.a
        self()
        a('s_memrealtime s[78:79]')
        a('s_waitcnt lgkmcnt(0)')
        a('s_mov_b32 s77, s78')
        a(f's_mul_i32 s78, s2, {waves_per_wg}')
        if wave_sgpr is not None: a(f's_add_u32 s78, s78, s{wave_sgpr}')
        a('s_lshl_b32 s78, s78, 6')
        a(f's_add_u32 s78, s78, {WS_PROF + self.kidx * 0x100000}')
        a(f'v_mov_b32 v{vt[0]}, 0')
        for i in range(self.n):
            a(f'v_mov_b32 v{vt[1]}, s{80+i}')
            a(f'buffer_store_dword v{vt[1]}, v{vt[0]}, s[4:7], s78 offen offset:{4*i}')
        for i in range(2):
            a(f'v_mov_b32 v{vt[1]}, s{76+i}')
            a(f'buffer_store_dword v{vt[1]}, v{vt[0]}, s[4:7], s78 offen offset:{56+4*i}')
        self.n = self.n0
    def fork(self): self.n0 = self.n

A_LN0, A_MOD0, A_KG0, A_WP0, A_END = 0, 64, 120, 696, 984
A_ROLES = [('ln1', 0, 64), ('mod', 64, 120), ('kgen', 120, 696), ('wprep', 696, 984)]
PROF_K = [(1, 576), (2, 3072), (3, 2304)]
TSTR = 1184
A_LDS = 32 * TSTR

def tile_load(a, srdb, soff, rowstride):
    a('v_lshrrev_b32 v5, 3, v0')
    a('v_and_b32 v6, 7, v0')
    a(f's_mov_b32 s30, {rowstride}')
    a('v_mul_lo_u32 v1, v5, s30')
    a('v_lshl_add_u32 v1, v6, 4, v1')
    for i in range(9):
        a(f'buffer_load_dwordx4 v[{10+4*i}:{13+4*i}], v1, s[{srdb}:{srdb+3}], s{soff} offen offset:{128*i}')
    a(f'v_mul_u32_u24 v2, {TSTR}, v5')
    a('v_lshl_add_u32 v2, v6, 4, v2')

def gen_prep(a):
    name = 'prep_kernel'
    kstart(a, name)
    a(f's_cmp_ge_u32 s2, {A_END}')
    a('s_cbranch_scc1 A_done')
    stamp = Stamps(a, 0)
    stamp(); stamp.fork()
    if PROF:
        a('v_lshrrev_b32 v1, 6, v0')
        a('v_readfirstlane_b32 s75, v1')
    def fin():
        if PROF:
            stamp()
            a('s_waitcnt vmcnt(0)')
        stamp.dump(4, 75)
        a('s_endpgm')
    a(f's_load_dwordx2 s[20:21], s[0:1], {KA["ws"]}')
    a(f's_cmp_ge_u32 s2, {A_WP0}')
    a('s_cbranch_scc1 A_wprep')
    a(f's_cmp_ge_u32 s2, {A_KG0}')
    a('s_cbranch_scc1 A_kgen')
    a(f's_cmp_ge_u32 s2, {A_MOD0}')
    a('s_cbranch_scc1 A_mod')
    a(f's_load_dwordx2 s[22:23], s[0:1], {KA["u"]}')
    a('s_mul_i32 s24, s2, 36864')
    a('s_waitcnt lgkmcnt(0)')
    srd(a, 4, 20, SZ['ws']); srd(a, 8, 22, SZ['u'])
    stamp()
    tile_load(a, 8, 24, 1152)
    a('v_and_b32 v7, 63, v0')
    a('v_lshrrev_b32 v8, 6, v0')
    a('v_lshrrev_b32 v9, 4, v7')
    a('v_bfe_u32 v46, v7, 2, 2')
    a('v_lshl_add_u32 v46, v9, 3, v46')
    a(f'v_mul_u32_u24 v3, {TSTR}, v46')
    a('v_and_b32 v46, 3, v7')
    a('v_lshl_add_u32 v3, v46, 3, v3')
    a('v_lshl_add_u32 v3, v8, 5, v3')
    a('v_and_b32 v46, 15, v7')
    a('v_lshl_add_u32 v46, v8, 4, v46')
    a('v_lshlrev_b32 v4, 12, v46')
    a('v_lshl_add_u32 v4, v9, 4, v4')
    for i in range(9):
        a(f's_waitcnt vmcnt({8-i})')
        a(f'ds_write_b128 v2, v[{10+4*i}:{13+4*i}] offset:{128*i}')
        for j in range(4):
            unpack(a, 50 + 8*i + 2*j, 51 + 8*i + 2*j, 10 + 4*i + j)
    a('v_add_f32 v46, v50, v51')
    a('v_add_f32 v47, v52, v53')
    for k in range(4, 72, 2):
        a(f'v_add_f32 v46, v46, v{50+k}')
        a(f'v_add_f32 v47, v47, v{51+k}')
    a('v_add_f32 v46, v46, v47')
    a('s_waitcnt lgkmcnt(0)')
    a('s_barrier')
    stamp()
    def tr_store(wsoff):
        for k in range(9):
            a(f'ds_read_b64_tr_b16 v[{10+4*k}:{11+4*k}], v3 offset:{128*k}')
            a(f'ds_read_b64_tr_b16 v[{12+4*k}:{13+4*k}], v3 offset:{128*k+4*TSTR}')
        a('s_lshl_b32 s25, s2, 6')
        a(f's_add_u32 s25, s25, {wsoff}')
        for k in range(9):
            a(f's_waitcnt lgkmcnt({min(15, 16-2*k)})')
            a(f'buffer_store_dwordx4 v[{10+4*k}:{13+4*k}], v4, s[4:7], s25 offen')
            if k < 8: a('s_add_u32 s25, s25, 262144')
    tr_store(WS_XT)
    def red8(r):
        a(f'v_add_f32_dpp v{r}, v{r}, v{r} quad_perm:[1,0,3,2] row_mask:0xf bank_mask:0xf')
        a(f'v_add_f32_dpp v{r}, v{r}, v{r} quad_perm:[2,3,0,1] row_mask:0xf bank_mask:0xf')
        a(f'v_add_f32_dpp v{r}, v{r}, v{r} row_half_mirror row_mask:0xf bank_mask:0xf')
    a('s_barrier')
    stamp()
    red8(46)
    a(f'v_mul_f32 v46, {f32(1/576)}, v46')
    a('v_mov_b32 v47, 0')
    a('v_mov_b32 v48, 0')
    for k in range(0, 72, 2):
        a(f'v_sub_f32 v122, v{50+k}, v46')
        a(f'v_sub_f32 v123, v{51+k}, v46')
        a('v_fmac_f32 v47, v122, v122')
        a('v_fmac_f32 v48, v123, v123')
    a('v_add_f32 v47, v47, v48')
    red8(47)
    a(f'v_mul_f32 v47, {f32(1/576)}, v47')
    ln_scalars(a, 46, 47, 48)
    for k in range(36):
        lo, hi = 50 + 2*k, 51 + 2*k
        a(f'v_sub_f32 v{lo}, v{lo}, v46')
        a(f'v_sub_f32 v{hi}, v{hi}, v46')
        a(f'v_cvt_pk_bf16_f32 v{lo}, v{lo}, v{hi}')
        a(f'v_and_b32 v{hi}, 0xffff0000, v{lo}')
        a(f'v_lshlrev_b32 v{lo}, 16, v{lo}')
        a(f'v_mul_f32 v{lo}, v{lo}, v47')
        a(f'v_mul_f32 v{hi}, v{hi}, v47')
        a(f'v_cvt_pk_bf16_f32 v{10+k}, v{lo}, v{hi}')
        if k % 4 == 3:
            i = k // 4
            a(f'ds_write_b128 v2, v[{10+4*i}:{13+4*i}] offset:{128*i}')
    a('s_waitcnt lgkmcnt(0)')
    a('s_barrier')
    stamp()
    tr_store(WS_XNT)
    fin()

    a.label('A_mod')
    a(f's_sub_u32 s3, s2, {A_MOD0}')
    a('s_cmp_ge_u32 s3, 54')
    a('s_cbranch_scc1 A_done')
    a(f's_load_dwordx2 s[22:23], s[0:1], {KA["wmod"]}')
    a(f's_load_dwordx2 s[24:25], s[0:1], {KA["c"]}')
    a('v_lshrrev_b32 v5, 3, v0')
    a('v_and_b32 v6, 7, v0')
    a('v_mul_u32_u24 v1, 6912, v5')
    a('v_lshl_add_u32 v1, v6, 4, v1')
    a('v_lshlrev_b32 v2, 1, v5')
    a('s_lshl_b32 s26, s3, 7')
    a('s_waitcnt lgkmcnt(0)')
    srd(a, 4, 20, SZ['ws']); srd(a, 8, 22, SZ['wmod']); srd(a, 12, 24, SZ['c'])
    stamp()
    for k in range(18):
        a(f'buffer_load_ushort v{90+k}, v2, s[12:15], 0 offen offset:{64*k}')
    for k in range(18):
        a(f'buffer_load_dwordx4 v[{10+4*k}:{13+4*k}], v1, s[8:11], s26 offen')
        if k < 17: a('s_add_u32 s26, s26, 221184')
    a('s_waitcnt vmcnt(18)')
    stamp()
    for k in range(18):
        a(f'v_lshlrev_b32 v{90+k}, 16, v{90+k}')
        a(f'v_mul_f32 v108, {f32(-LOG2E)}, v{90+k}')
        a('v_exp_f32 v108, v108')
        a('v_add_f32 v108, 1.0, v108')
        a('v_rcp_f32 v108, v108')
        a(f'v_mul_f32 v{90+k}, v{90+k}, v108')
        rb(a, 90 + k, 90 + k)
    for j in range(8): a(f'v_mov_b32 v{110+j}, 0')
    for k in range(18):
        a(f's_waitcnt vmcnt({17-k})')
        for j in range(4):
            unpack(a, 108, 109, 10 + 4*k + j)
            a(f'v_fmac_f32 v{110+2*j}, v108, v{90+k}')
            a(f'v_fmac_f32 v{111+2*j}, v109, v{90+k}')
    a('v_lshlrev_b32 v3, 8, v5')
    a('v_lshl_add_u32 v3, v6, 5, v3')
    a('ds_write_b128 v3, v[110:113]')
    a('ds_write_b128 v3, v[114:117] offset:16')
    a('s_waitcnt lgkmcnt(0)')
    a('s_barrier')
    stamp()
    a('v_readfirstlane_b32 s27, v0')
    a('s_cmp_ge_u32 s27, 64')
    a('s_cbranch_scc1 A_done')
    a('v_lshlrev_b32 v3, 2, v0')
    for k in range(32):
        a(f'ds_read_b32 v{10+k}, v3 offset:{256*k}')
    a('s_waitcnt lgkmcnt(0)')
    for st in (16, 8, 4, 2, 1):
        for k in range(st):
            a(f'v_add_f32 v{10+k}, v{10+k}, v{10+k+st}')
    rb(a, 10, 10)
    a('s_mov_b32 s28, 0')
    a('s_sub_u32 s29, s3, 9')
    a('s_cmp_lt_u32 s29, 9')
    a('s_cselect_b32 s28, 1.0, s28')
    a('s_sub_u32 s29, s3, 36')
    a('s_cmp_lt_u32 s29, 9')
    a('s_cselect_b32 s28, 1.0, s28')
    a('v_add_f32 v10, s28, v10')
    rb(a, 10, 10)
    a('s_lshl_b32 s26, s3, 8')
    a(f's_add_u32 s26, s26, {WS_MOD}')
    a('buffer_store_dword v10, v3, s[4:7], s26 offen')
    a('v_lshrrev_b32 v11, 16, v10')
    a('v_lshlrev_b32 v12, 1, v0')
    a('s_lshl_b32 s26, s3, 7')
    a(f's_add_u32 s26, s26, {WS_MODH}')
    a('buffer_store_short v11, v12, s[4:7], s26 offen')
    fin()

    a.label('A_kgen')
    PT, TB = 2048, 2048 + 4*3072
    a(f's_sub_u32 s3, s2, {A_KG0}')
    a('s_load_dwordx4 s[24:27], s[0:1], 8')
    a('s_load_dwordx4 s[28:31], s[0:1], 24')
    a('s_load_dwordx4 s[32:35], s[0:1], 40')
    a(f's_load_dwordx2 s[36:37], s[0:1], {KA["logdt"]}')
    a('v_and_b32 v7, 63, v0')
    a('v_lshrrev_b32 v8, 6, v0')
    a('v_lshrrev_b32 v9, 4, v7')
    a('v_and_b32 v6, 15, v7')
    a('v_and_b32 v1, 127, v0')
    a('v_lshlrev_b32 v1, 1, v1')
    a('s_lshl_b32 s38, s3, 8')
    a('s_lshl_b32 s39, s3, 1')
    a('v_mov_b32 v2, 0')
    a('s_waitcnt lgkmcnt(0)')
    srd(a, 4, 20, SZ['ws'])
    for j, p in enumerate((24, 26, 28, 30, 32, 34)):
        srd(a, 40 + 4*j, p, 147456)
    srd(a, 64, 36, 1152)
    stamp()
    a('buffer_load_ushort v16, v2, s[64:67], s39 offen')
    for j in range(6):
        a(f'buffer_load_ushort v{10+j}, v1, s[{40+4*j}:{43+4*j}], s38 offen')
    a('v_lshrrev_b32 v24, 3, v6')
    a('v_and_b32 v25, 7, v6')
    a('v_lshl_add_u32 v20, v24, 7, v25')
    a('v_bfe_u32 v24, v6, 2, 1')
    a('v_and_b32 v25, 3, v6')
    a('v_lshlrev_b32 v25, 1, v25')
    a('v_lshl_add_u32 v21, v24, 7, v25')
    a('v_add_u32 v21, 256, v21')
    a('v_bfe_u32 v24, v6, 1, 2')
    a('v_and_b32 v25, 1, v6')
    a('v_lshlrev_b32 v25, 2, v25')
    a('v_lshl_add_u32 v26, v24, 7, v25')
    a('v_add_u32 v26, 512, v26')
    a('v_cmp_lt_u32 vcc, 7, v6')
    a('v_cndmask_b32 v21, v21, v26, vcc')
    a('v_lshlrev_b32 v22, 7, v6')
    a('v_add_u32 v22, 1024, v22')
    a('v_lshlrev_b32 v23, 3, v6')
    for r in (20, 21, 22, 23): a(f'v_cvt_f32_u32 v{r}, v{r}')
    a('s_waitcnt vmcnt(0)')
    stamp()
    for j in range(7): a(f'v_lshlrev_b32 v{10+j}, 16, v{10+j}')
    a(f'v_mul_f32 v16, {f32(LOG2E)}, v16')
    a('v_exp_f32 v16, v16')
    rb(a, 16, 16)
    a('v_mul_f32 v28, v16, v10')
    a(f'v_mul_f32 v28, {f32(LOG2E)}, v28')
    a('v_mul_f32 v29, v16, v11')
    a(f'v_mul_f32 v29, {f32(1/(2*math.pi))}, v29')
    a('v_mul_f32 v12, v16, v12')
    a('v_mul_f32 v13, v16, v13')
    a('v_mul_f32 v30, v14, v12')
    a('v_fma_f32 v30, -v15, v13, v30')
    a('v_mul_f32 v31, v14, v13')
    a('v_fma_f32 v31, v15, v12, v31')
    a('v_lshlrev_b32 v1, 3, v1')
    a('ds_write_b128 v1, v[28:31]')
    a('v_lshl_add_u32 v3, v8, 5, v9')
    a('v_lshlrev_b32 v3, 4, v3')
    for r in range(40, 52): a(f'v_mov_b32 v{r}, 0')
    a('s_waitcnt lgkmcnt(0)')
    a('s_barrier')
    stamp()
    for st in range(8):
        a(f'ds_read_b128 v[{60+4*st}:{63+4*st}], v3 offset:{64*st}')
    for st in range(8):
        P = 60 + 4*st
        a(f's_waitcnt lgkmcnt({7-st})')
        o = 96 + 16 * (st & 1)
        for t in range(4):
            a(f'v_mul_f32 v{o+t}, v{P}, v{20+t}')
            a(f'v_mul_f32 v{o+8+t}, v{P+1}, v{20+t}')
        for t in range(4):
            a(f'v_exp_f32 v{o+t}, v{o+t}')
            a(f'v_fract_f32 v{o+8+t}, v{o+8+t}')
        for t in range(4):
            a(f'v_cos_f32 v{o+4+t}, v{o+8+t}')
            a(f'v_sin_f32 v{o+8+t}, v{o+8+t}')
        a(f'v_mul_f32 v{o+12}, v{P+2}, v{o+3}')
        a(f'v_mul_f32 v{o+13}, v{P+3}, v{o+3}')
        a(f'v_mul_f32 v{o+14}, v{o+12}, v{o+7}')
        a(f'v_mul_f32 v{o+15}, v{o+12}, v{o+11}')
        a(f'v_fma_f32 v{o+14}, -v{o+13}, v{o+11}, v{o+14}')
        a(f'v_fma_f32 v{o+15}, -v{o+13}, v{o+7}, -v{o+15}')
        for t in range(3):
            a(f'v_mul_f32 v{o+4+t}, v{o+t}, v{o+4+t}')
            a(f'v_mul_f32 v{o+8+t}, v{o+t}, v{o+8+t}')
        for t in range(3):
            a(f'v_mfma_f32_16x16x4_f32 v[{40+4*t}:{43+4*t}], v{o+4+t}, v{o+14}, v[{40+4*t}:{43+4*t}]')
        for t in range(3):
            a(f'v_mfma_f32_16x16x4_f32 v[{40+4*t}:{43+4*t}], v{o+8+t}, v{o+15}, v[{40+4*t}:{43+4*t}]')
    stamp()
    a('v_mul_u32_u24 v24, 3072, v8')
    a(f'v_add_u32 v24, {PT}, v24')
    a('v_lshrrev_b32 v25, 1, v9')
    a('v_and_b32 v26, 1, v9')
    a('v_lshlrev_b32 v27, 9, v25')
    a('v_lshl_add_u32 v27, v6, 5, v27')
    a('v_lshl_add_u32 v27, v26, 4, v27')
    a('v_add_u32 v27, v24, v27')
    a('v_lshlrev_b32 v28, 8, v26')
    a('v_lshl_add_u32 v29, v6, 4, v28')
    a('v_add_u32 v29, 1024, v29')
    a('v_add_u32 v30, 8, v29')
    a('v_lshl_add_u32 v31, v6, 3, v28')
    a('v_add_u32 v31, 1536, v31')
    a('v_add_u32 v32, 128, v31')
    a('v_cmp_lt_u32 vcc, 1, v9')
    a('v_cndmask_b32 v29, v29, v31, vcc')
    a('v_cndmask_b32 v30, v30, v32, vcc')
    a('v_add_u32 v29, v24, v29')
    a('v_add_u32 v30, v24, v30')
    a('v_lshlrev_b32 v31, 8, v9')
    a('v_lshl_add_u32 v31, v6, 2, v31')
    a('v_add_u32 v31, v24, v31')
    a('ds_write_b128 v27, v[40:43]')
    a('ds_write_b64 v29, v[44:45]')
    a('ds_write_b64 v30, v[46:47]')
    for r in range(4):
        a(f'ds_write_b32 v31, v{48+r} offset:{2048+64*r}')
    a('s_waitcnt lgkmcnt(0)')
    a('s_barrier')
    a('v_min_u32 v24, 191, v0')
    a('v_lshlrev_b32 v25, 4, v24')
    for w in range(4):
        a(f'ds_read_b128 v[{40+4*w}:{43+4*w}], v25 offset:{PT+3072*w}')
    a('v_lshlrev_b32 v26, 3, v0')
    a('v_sub_u32 v26, 2047, v26')
    for j in range(8):
        a(f'v_subrev_u32 v{60+j}, {j}, v26')
        a(f'v_cvt_f32_u32 v{70+j}, v{60+j}')
    for j in range(0, 8, 2):
        a(f'v_cvt_pk_bf16_f32 v{70+j}, v{70+j}, v{71+j}')
        a(f'v_lshrrev_b32 v{71+j}, 16, v{70+j}')
        a(f'v_and_b32 v{70+j}, 0xffff, v{70+j}')
    a('v_cmp_gt_u32 vcc, 240, v0')
    for j in range(8):
        a(f'v_subrev_u32 v{70+j}, 17024, v{70+j}')
        a(f'v_cndmask_b32 v{60+j}, v{60+j}, v{70+j}, vcc')
        a(f'v_lshlrev_b32 v{60+j}, 1, v{60+j}')
    a('s_waitcnt lgkmcnt(0)')
    for r in range(4):
        a(f'v_add_f32 v{40+r}, v{40+r}, v{44+r}')
        a(f'v_add_f32 v{48+r}, v{48+r}, v{52+r}')
        a(f'v_add_f32 v{40+r}, v{40+r}, v{48+r}')
    a('v_cvt_pk_bf16_f32 v40, v40, v41')
    a('v_cvt_pk_bf16_f32 v41, v42, v43')
    a('v_lshlrev_b32 v25, 3, v24')
    a(f'ds_write_b64 v25, v[40:41] offset:{TB}')
    a('s_waitcnt lgkmcnt(0)')
    a('s_barrier')
    for j in range(8):
        a(f'ds_read_u16 v{70+j}, v{60+j} offset:{TB}')
    a('s_lshl_b32 s38, s3, 12')
    a(f's_add_u32 s38, s38, {WS_KREV}')
    a('v_lshlrev_b32 v25, 4, v0')
    a('s_waitcnt lgkmcnt(0)')
    for j in range(4):
        a(f'v_lshl_or_b32 v{40+j}, v{71+2*j}, 16, v{70+2*j}')
    a('buffer_store_dwordx4 v[40:43], v25, s[4:7], s38 offen')
    fin()

    a.label('A_wprep')
    a(f's_sub_u32 s3, s2, {A_WP0}')
    a('s_and_b32 s26, s3, 7')
    a('s_lshr_b32 s27, s3, 3')
    a('s_cmp_ge_u32 s27, 18')
    a('s_cbranch_scc1 A_wp2')
    a(f's_load_dwordx2 s[22:23], s[0:1], {KA["w1"]}')
    a('s_mul_i32 s24, s27, 294912')
    a('s_mul_i32 s25, s26, 1152')
    a('s_add_u32 s24, s24, s25')
    a('s_mov_b32 s31, 9216')
    a(f's_mov_b32 s28, {WS_W1F}')
    a('s_branch A_wpc')
    a.label('A_wp2')
    a(f's_load_dwordx2 s[22:23], s[0:1], {KA["w2"]}')
    a('s_sub_u32 s27, s27, 18')
    a('s_mul_i32 s24, s26, 18')
    a('s_add_u32 s24, s24, s27')
    a('s_mul_i32 s24, s24, 36864')
    a('s_mov_b32 s31, 1152')
    a(f's_mov_b32 s28, {WS_W2F}')
    a.label('A_wpc')
    a('s_mul_i32 s29, s26, 663552')
    a('s_add_u32 s28, s28, s29')
    a('s_mul_i32 s29, s27, 3072')
    a('s_add_u32 s28, s28, s29')
    a('s_waitcnt lgkmcnt(0)')
    srd(a, 4, 20, SZ['ws']); srd(a, 8, 22, SZ['w1'])
    stamp()
    a('v_lshrrev_b32 v5, 3, v0')
    a('v_and_b32 v6, 7, v0')
    a('v_mul_lo_u32 v1, v5, s31')
    a('v_lshl_add_u32 v1, v6, 4, v1')
    for i in range(9):
        a(f'buffer_load_dwordx4 v[{10+4*i}:{13+4*i}], v1, s[8:11], s24 offen offset:{128*i}')
    a(f'v_mul_u32_u24 v2, {TSTR}, v5')
    a('v_lshl_add_u32 v2, v6, 4, v2')
    a('v_and_b32 v7, 63, v0')
    a('v_lshrrev_b32 v8, 6, v0')
    a('v_lshrrev_b32 v9, 2, v7')
    a(f'v_mul_u32_u24 v3, {TSTR}, v9')
    a('v_and_b32 v46, 3, v7')
    a('v_lshl_add_u32 v3, v46, 3, v3')
    a('v_mul_u32_u24 v46, 288, v8')
    a('v_add_u32 v3, v3, v46')
    a('v_mul_u32_u24 v4, 165888, v8')
    a('v_lshl_add_u32 v4, v7, 4, v4')
    for i in range(9):
        a(f's_waitcnt vmcnt({8-i})')
        a(f'ds_write_b128 v2, v[{10+4*i}:{13+4*i}] offset:{128*i}')
    a('s_waitcnt lgkmcnt(0)')
    a('s_barrier')
    stamp()
    for k in range(9):
        a(f'ds_read_b64_tr_b16 v[{10+4*k}:{11+4*k}], v3 offset:{32*k}')
        a(f'ds_read_b64_tr_b16 v[{12+4*k}:{13+4*k}], v3 offset:{32*k+16*TSTR}')
    for k in range(9):
        a(f's_waitcnt lgkmcnt({min(15, 16-2*k)})')
        a(f'buffer_store_dwordx4 v[{10+4*k}:{13+4*k}], v4, s[4:7], s28 offen offset:{1024*(k%3)}')
        if k % 3 == 2 and k < 8: a('s_add_u32 s28, s28, 55296')
    fin()
    a.label('A_done')
    a('s_endpgm')
    return name, a.maxv + 1, a.maxs + 1

B_LDS = 4608 + 4096
def gen_conv(a):
    name = 'conv_kernel'
    kstart(a, name)
    a('s_cmp_ge_u32 s2, 576')
    a('s_cbranch_scc1 B_done')
    stamp = Stamps(a, 1)
    stamp()
    a(f's_load_dwordx2 s[20:21], s[0:1], {KA["ws"]}')
    a(f's_load_dwordx2 s[22:23], s[0:1], {KA["dskip"]}')
    a('v_lshlrev_b32 v1, 4, v0')
    a('v_and_b32 v6, 15, v0')
    a('v_lshrrev_b32 v9, 4, v0')
    a('s_lshl_b32 s3, s2, 12')
    a('s_lshl_b32 s24, s2, 2')
    a('s_lshl_b32 s25, s2, 1')
    a('s_and_b32 s25, s25, 0xfffffffc')
    a('s_waitcnt lgkmcnt(0)')
    srd(a, 4, 20, SZ['ws'])
    a(f's_add_u32 s26, s3, {WS_XNT}')
    for i in range(4):
        a(f'buffer_load_dwordx4 v[{10+4*i}:{13+4*i}], v1, s[4:7], s26 offen offset:{1024*i}')
    a(f's_add_u32 s27, s3, {WS_KREV}')
    a('s_mov_b32 m0, 0')
    for i in range(4):
        a(f'buffer_load_dwordx4 v1, s[4:7], s27 offen offset:{1024*i} lds')
    a('s_load_dword s30, s[20:21], s24 offset:%d' % (WS_MOD))
    a('s_load_dword s31, s[20:21], s24 offset:%d' % (WS_MOD + 2304))
    a('s_load_dword s32, s[20:21], s24 offset:%d' % (WS_MOD + 4608))
    a('s_load_dword s33, s[22:23], s25')
    a('v_lshlrev_b32 v2, 5, v6')
    a('v_lshl_add_u32 v2, v9, 3, v2')
    a(f's_add_u32 s28, s3, {WS_XT}')
    for al in range(8):
        a(f'buffer_load_dwordx2 v[{30+2*al}:{31+2*al}], v2, s[4:7], s28 offen offset:{512*al}')
    a('v_mov_b32 v46, 0')
    a('v_mov_b32 v47, 0')
    a('v_lshlrev_b32 v3, 3, v0')
    a('ds_write_b64 v3, v[46:47] offset:4096')
    a('v_lshlrev_b32 v4, 3, v9')
    a('v_sub_u32 v4, v4, v6')
    a('v_add_u32 v4, 15, v4')
    a('v_lshlrev_b32 v4, 1, v4')
    a('v_lshlrev_b32 v5, 5, v6')
    a('v_lshl_add_u32 v5, v9, 4, v5')
    a('v_add_u32 v5, 4128, v5')
    a('s_waitcnt lgkmcnt(0)')
    a('s_bitcmp1_b32 s2, 0')
    a('s_cselect_b32 s34, 0, 16')
    a('s_lshl_b32 s33, s33, s34')
    a('s_and_b32 s33, s33, 0xffff0000')
    a('v_mov_b32 v48, s30')
    for i in range(4):
        a(f's_waitcnt vmcnt({15-i})')
        for j in range(4):
            r = 10 + 4*i + j
            unpack(a, 46, 47, r)
            a('v_fma_f32 v46, v46, s31, v48')
            a('v_fma_f32 v47, v47, s31, v48')
            a(f'v_cvt_pk_bf16_f32 v{r}, v46, v47')
        a(f'ds_write_b128 v1, v[{10+4*i}:{13+4*i}] offset:{4608+1024*i}')
    stamp()
    a('s_waitcnt vmcnt(8) lgkmcnt(0)')
    stamp()
    ACC, BF, AF = 50, 82, 146
    def rd(s0):
        buf = s0 & 1
        for j in range(8):
            a(f'ds_read_b128 v[{AF+32*buf+4*j}:{AF+32*buf+4*j+3}], v4 offset:{64*(63-(s0+8*j))}')
            a(f'ds_read_b128 v[{BF+32*buf+4*j}:{BF+32*buf+4*j+3}], v5 offset:{512*j+64*(7-s0)}')
    rd(0)
    for s0 in range(8):
        buf = s0 & 1
        a('s_waitcnt lgkmcnt(0)')
        if s0 < 7: rd(s0 + 1)
        for i in range(8):
            for al in range(i, 8):
                c = f'v[{ACC+4*al}:{ACC+4*al+3}]'
                cin = '0' if (s0 == 0 and i == 0) else c
                A = AF + 32*buf + 4*i; B = BF + 32*buf + 4*(al - i)
                a(f'v_mfma_f32_16x16x32_bf16 {c}, v[{A}:{A+3}], v[{B}:{B+3}], {cin}')
    stamp()
    for al in range(8):
        a(f'ds_read_b64 v[{10+2*al}:{11+2*al}], v2 offset:{4608+512*al}')
    a(f's_add_u32 s28, s3, {WS_X2T}')
    a('s_waitcnt vmcnt(0) lgkmcnt(0)')
    for al in range(8):
        for hh in range(2):
            unpack(a, 46, 47, 10 + 2*al + hh)
            unpack(a, 48, 49, 30 + 2*al + hh)
            y0, y1 = ACC + 4*al + 2*hh, ACC + 4*al + 2*hh + 1
            a(f'v_fma_f32 v46, v46, s33, v{y0}')
            a(f'v_fma_f32 v47, v47, s33, v{y1}')
            a('v_fma_f32 v46, v46, s32, v48')
            a('v_fma_f32 v47, v47, s32, v49')
            a(f'v_cvt_pk_bf16_f32 v{30+2*al+hh}, v46, v47')
        a(f'buffer_store_dwordx2 v[{30+2*al}:{31+2*al}], v2, s[4:7], s28 offen offset:{512*al}')
    stamp()
    if PROF: a('s_waitcnt vmcnt(0)')
    stamp.dump(1, None, (46, 47))
    a.label('B_done')
    a('s_endpgm')
    return name, a.maxv + 1, a.maxs + 1

YF, HF, ST = 0, 73728, 147456
C_LDS = ST + 2*1536 + 64
def gen_mlp(a):
    name = 'mlp_kernel'
    kstart(a, name)
    ACC, BFR, RING = 8, 56, 88
    a('s_cmp_ge_u32 s2, 256')
    a('s_cbranch_scc1 C_done')
    stamp = Stamps(a, 2)
    stamp()
    a(f's_load_dwordx2 s[20:21], s[0:1], {KA["ws"]}')
    a(f's_load_dwordx2 s[22:23], s[0:1], {KA["b1"]}')
    a('v_lshrrev_b32 v7, 6, v0')
    a('v_and_b32 v0, 63, v0')
    a('v_readfirstlane_b32 s3, v7')
    a('s_and_b32 s24, s2, 7')
    a('s_lshr_b32 s25, s2, 3')
    a('v_lshlrev_b32 v1, 4, v0')
    a('s_and_b32 s26, s3, 3')
    a('s_lshr_b32 s27, s3, 2')
    a('v_lshrrev_b32 v6, 3, v0')
    a('v_lshlrev_b32 v6, 12, v6')
    a('v_lshrrev_b32 v7, 4, v0')
    a('v_lshlrev_b32 v2, 1, v7')
    a('v_and_b32 v3, 7, v0')
    a('v_xor_b32 v2, v2, v3')
    a('v_lshl_add_u32 v6, v2, 4, v6')
    a('s_lshl_b32 s28, s25, 7')
    a('s_mul_i32 s29, s3, 196608')
    a('s_add_u32 s28, s28, s29')
    a(f's_add_u32 s28, s28, {WS_X2T}')
    a('s_mul_i32 s29, s3, 6144')
    a(f's_add_u32 s29, s29, {HF}')
    a('s_waitcnt lgkmcnt(0)')
    srd(a, 4, 20, SZ['ws']); srd(a, 8, 22, SZ['b1'])
    stamp()
    for p in range(6):
        a('s_mov_b32 m0, s29')
        a('buffer_load_dwordx4 v6, s[4:7], s28 offen lds')
        if p < 5:
            a('s_add_u32 s28, s28, 32768')
            a('s_add_u32 s29, s29, 1024')
    stamp()
    ppairs = [80, 82, 84, 86] + list(range(124, 164, 2))
    cbp, sbp = ppairs[:12], ppairs[12:]
    a('v_lshlrev_b32 v2, 3, v7')
    a('s_mul_i32 s30, s27, 384')
    a(f's_add_u32 s30, s30, {WS_MODH+3*1152}')
    for T in range(12):
        a(f'buffer_load_dwordx2 v[{cbp[T]}:{cbp[T]+1}], v2, s[4:7], s30 offen offset:{1152+32*T}')
        a(f'buffer_load_dwordx2 v[{sbp[T]}:{sbp[T]+1}], v2, s[4:7], s30 offen offset:{32*T}')
    stamp()
    a('s_mul_i32 s31, s24, 12')
    a('s_add_u32 s31, s31, s3')
    a('s_mul_i32 s31, s31, 55296')
    a(f's_add_u32 s40, s31, {WS_W1F}')
    a(f's_add_u32 s41, s31, {WS_W2F}')
    state = {'n': 0}
    def wload0(step):
        if step == 18: a('s_mov_b32 s40, s41')
        base = RING + 12 * (step % 5)
        for i in range(3):
            a(f'buffer_load_dwordx4 v[{base+4*i}:{base+4*i+3}], v1, s[4:7], s40 offen offset:{1024*i}')
        a('s_add_u32 s40, s40, 3072')
    for st in range(3): wload0(st)
    a('v_lshrrev_b32 v2, 2, v0')
    a('v_lshrrev_b32 v3, 1, v2')
    a('v_and_b32 v3, 3, v3')
    a('v_xor_b32 v3, s26, v3')
    a('v_lshlrev_b32 v3, 5, v3')
    a('v_lshl_add_u32 v3, v2, 7, v3')
    a('v_and_b32 v2, 3, v0')
    a('v_lshl_add_u32 v3, v2, 3, v3')
    a('s_mul_i32 s31, s27, 24576')
    a(f's_add_u32 s31, s31, {HF}')
    a('v_add_u32 v3, s31, v3')
    a('v_and_b32 v4, 15, v0')
    a('s_lshl_b32 s31, s26, 7')
    a(f's_add_u32 s31, s31, {ST}')
    a('v_lshlrev_b32 v4, 3, v4')
    a('v_add_u32 v4, s31, v4')
    a('s_lshl_b32 s31, s27, 9')
    a('v_add_u32 v5, s31, v4')
    stamp()
    a('s_waitcnt vmcnt(33)')
    a('s_barrier')
    stamp()
    RAW = 56
    for T in range(12):
        a(f'ds_read_b64_tr_b16 v[{RAW+2*T}:{RAW+2*T+1}], v3 offset:{2048*T}')
    a('s_mul_i32 s32, s25, 18')
    a('s_mul_i32 s33, s27, 6')
    a('s_add_u32 s32, s32, s33')
    a('s_lshl_b32 s32, s32, 2')
    a('s_add_u32 s32, s32, s26')
    a('s_lshl_b32 s32, s32, 10')
    a(f's_add_u32 s32, s32, {WS_XF}')
    a('s_waitcnt lgkmcnt(0)')
    a('s_cmp_lg_u32 s24, 0')
    a('s_cbranch_scc1 C_noxf')
    for k in range(6):
        a(f'buffer_store_dwordx4 v[{RAW+4*k}:{RAW+4*k+3}], v1, s[4:7], s32 offen')
        if k < 5: a('s_add_u32 s32, s32, 4096')
    a.label('C_noxf')
    a('s_mov_b32 s33, 0x3f803f80')
    a('v_mov_b32 v164, 0')
    a('v_mov_b32 v165, 0')
    for k in range(24):
        a(f'v_dot2_f32_bf16 v164, v{RAW+k}, s33, v164')
    for k in range(24):
        a(f'v_dot2_f32_bf16 v165, v{RAW+k}, v{RAW+k}, v165')
    for k in range(24):
        unpack(a, ACC + 2*k, ACC + 2*k + 1, RAW + k)
    def reduce_stats(rnd):
        for sw in ('v_permlane16_swap_b32', 'v_permlane32_swap_b32'):
            a('v_mov_b32 v166, v164')
            a('v_mov_b32 v167, v165')
            a(f'{sw} v164, v166')
            a(f'{sw} v165, v167')
            a('v_add_f32 v164, v164, v166')
            a('v_add_f32 v165, v165, v167')
        a(f'ds_write_b64 v5, v[164:165] offset:{1536*rnd}')
        a('s_waitcnt lgkmcnt(0)')
        a('s_barrier')
        for t in range(3):
            a(f'ds_read_b64 v[{RAW+2*t}:{RAW+2*t+1}], v4 offset:{1536*rnd+512*t}')
        a('s_waitcnt lgkmcnt(0)')
        a(f'v_add_f32 v164, v{RAW}, v{RAW+2}')
        a(f'v_add_f32 v165, v{RAW+1}, v{RAW+3}')
        a(f'v_add_f32 v164, v164, v{RAW+4}')
        a(f'v_add_f32 v165, v165, v{RAW+5}')
        a(f'v_mul_f32 v164, {f32(1/576)}, v164')
        a(f'v_mul_f32 v165, {f32(1/576)}, v165')
        a('v_fma_f32 v165, -v164, v164, v165')
        a('v_max_f32 v165, 0, v165')
        ln_scalars(a, 164, 165, 166)
        a('v_mul_f32 v164, v164, v165')
    reduce_stats(0)
    stamp()
    a('v_mov_b32 v6, v164')
    a('v_mov_b32 v7, v165')
    a('v_mov_b32 v164, 0')
    a('v_mov_b32 v165, 0')
    a('s_waitcnt vmcnt(9)')
    for T in range(12):
        for hh in range(2):
            unpack(a, RAW, RAW + 1, cbp[T] + hh)
            unpack(a, RAW + 2, RAW + 3, sbp[T] + hh)
            for e in range(2):
                x = ACC + 4*T + 2*hh + e
                a(f'v_fma_f32 v{x}, v{x}, v7, -v6')
                a(f'v_fma_f32 v{x}, v{x}, v{RAW+e}, v{RAW+2+e}')
                a(f'v_add_f32 v164, v164, v{x}')
                a(f'v_fmac_f32 v165, v{x}, v{x}')
    a('v_lshrrev_b32 v2, 4, v0')
    a('v_lshlrev_b32 v2, 3, v2')
    a('s_mul_i32 s31, s24, 1152')
    a('s_mul_i32 s33, s3, 96')
    a('s_add_u32 s31, s31, s33')
    for i in range(3):
        a(f'buffer_load_dwordx2 v[{80+2*i}:{81+2*i}], v2, s[8:11], s31 offen offset:{32*i}')
    for st in range(3, 5): wload0(st)
    reduce_stats(1)
    stamp()
    a('s_mul_i32 s31, s27, 24576')
    a('s_lshl_b32 s33, s26, 10')
    a('s_add_u32 s31, s31, s33')
    a('v_add_u32 v2, s31, v1')
    for k in range(6):
        for j in range(4):
            x = ACC + 8*k + 2*j
            a(f'v_fma_f32 v{x}, v{x}, v165, -v164')
            a(f'v_fma_f32 v{x+1}, v{x+1}, v165, -v164')
            a(f'v_cvt_pk_bf16_f32 v{RAW+4*(k&1)+j}, v{x}, v{x+1}')
        a(f'ds_write_b128 v2, v[{RAW+4*(k&1)}:{RAW+4*(k&1)+3}] offset:{YF+4096*k}')
    BIAS = 148
    a('s_waitcnt vmcnt(6)')
    for i in range(3):
        unpack(a, BIAS + 4*i, BIAS + 4*i + 1, 80 + 2*i)
        unpack(a, BIAS + 4*i + 2, BIAS + 4*i + 3, 81 + 2*i)
    a(f'v_add_u32 v3, 65536, v1')
    a(f'v_add_u32 v4, {HF}, v1')
    a(f'v_add_u32 v5, {HF+65536}, v1')
    a('s_waitcnt lgkmcnt(0)')
    a('s_barrier')
    def bread(ph, kk):
        buf = kk & 1
        lo, hi = (1, 3) if ph == 0 else (4, 5)
        for tt in range(4):
            off = kk * 4096 + tt * 1024
            v = lo if off < 65536 else hi
            a(f'ds_read_b128 v[{BFR+16*buf+4*tt}:{BFR+16*buf+4*tt+3}], v{v} offset:{off % 65536}')
    def phase2(ph):
        bread(ph, 0)
        for kk in range(18):
            step = 18*ph + kk
            if kk < 17:
                bread(ph, kk + 1)
                a('s_waitcnt lgkmcnt(4)')
            else:
                a('s_waitcnt lgkmcnt(0)')
            rem = min(4, 35 - step)
            a(f's_waitcnt vmcnt({3*rem})')
            base = RING + 12 * (step % 5); buf = kk & 1
            pre = step + 5 <= 35
            if pre and step + 5 == 18: a('s_mov_b32 s40, s41')
            for i in range(3):
                for tt in range(4):
                    c = f'v[{ACC+16*i+4*tt}:{ACC+16*i+4*tt+3}]'
                    if kk == 0: cin = f'v[{BIAS+4*i}:{BIAS+4*i+3}]' if ph == 0 else '0'
                    else: cin = c
                    B = BFR + 16*buf + 4*tt
                    a(f'v_mfma_f32_16x16x32_bf16 {c}, v[{base+4*i}:{base+4*i+3}], v[{B}:{B+3}], {cin}')
                if pre:
                    a(f'buffer_load_dwordx4 v[{base+4*i}:{base+4*i+3}], v1, s[4:7], s40 offen offset:{1024*i}')
            if pre: a('s_add_u32 s40, s40, 3072')
    stamp()
    phase2(0)
    stamp()
    c0 = -2 * 0.7978845608028654 * LOG2E
    c1 = c0 * 0.044715
    a(f's_mov_b32 s34, {f32(c1)}')
    a(f'v_mov_b32 v160, {f32(c0)}')
    PK = BFR
    for tt in range(4):
        for i in range(3):
            xs = [ACC + 16*i + 4*tt + r for r in range(4)]
            for r, x in enumerate(xs):
                a(f'v_mul_f32 v{148+r}, v{x}, v{x}')
            for r, x in enumerate(xs):
                a(f'v_fma_f32 v{148+r}, v{148+r}, s34, v160')
            for r, x in enumerate(xs):
                a(f'v_mul_f32 v{148+r}, v{148+r}, v{x}')
            for r in range(4): a(f'v_exp_f32 v{148+r}, v{148+r}')
            for r in range(4): a(f'v_add_f32 v{148+r}, 1.0, v{148+r}')
            for r in range(4): a(f'v_rcp_f32 v{148+r}, v{148+r}')
            for r, x in enumerate(xs):
                a(f'v_mul_f32 v{148+r}, v{148+r}, v{x}')
            a(f'v_cvt_pk_bf16_f32 v{PK+6*tt+2*i}, v148, v149')
            a(f'v_cvt_pk_bf16_f32 v{PK+6*tt+2*i+1}, v150, v151')
    def frag_out(emit128, emit64):
        a('s_bitcmp1_b32 s3, 0')
        lo, le = a.newlabel('C_odd'), a.newlabel('C_end')
        a(f's_cbranch_scc1 {lo}')
        for tt in range(4):
            emit128(PK + 6*tt, 0, tt)
            emit64(PK + 6*tt + 4, 1, tt, 0)
        a(f's_branch {le}')
        a.label(lo)
        for tt in range(4):
            emit64(PK + 6*tt, 0, tt, 8)
            emit128(PK + 6*tt + 2, 1, tt)
        a.label(le)
    a('s_mul_i32 s35, s3, 3')
    a('s_lshr_b32 s35, s35, 1')
    a('s_lshl_b32 s36, s35, 12')
    a('v_add_u32 v2, s36, v4')
    frag_out(lambda r, dk, tt: a(f'ds_write_b128 v2, v[{r}:{r+3}] offset:{4096*dk+1024*tt}'),
             lambda r, dk, tt, h: a(f'ds_write_b64 v2, v[{r}:{r+1}] offset:{4096*dk+1024*tt+h}'))
    stamp()
    a('s_waitcnt lgkmcnt(0)')
    a('s_barrier')
    stamp()
    phase2(1)
    stamp()
    for tt in range(4):
        for i in range(3):
            x = ACC + 16*i + 4*tt
            a(f'v_cvt_pk_bf16_f32 v{PK+6*tt+2*i}, v{x}, v{x+1}')
            a(f'v_cvt_pk_bf16_f32 v{PK+6*tt+2*i+1}, v{x+2}, v{x+3}')
    a(f's_mul_i32 s36, s24, {PSZ}')
    a('s_mul_i32 s37, s25, 18')
    a('s_add_u32 s37, s37, s35')
    a('s_lshl_b32 s37, s37, 12')
    a('s_add_u32 s36, s36, s37')
    a(f's_add_u32 s36, s36, {WS_PART}')
    a('s_add_u32 s37, s36, 4096')
    frag_out(lambda r, dk, tt: a(f'buffer_store_dwordx4 v[{r}:{r+3}], v1, s[4:7], s{36+dk} offen offset:{1024*tt}'),
             lambda r, dk, tt, h: a(f'buffer_store_dwordx2 v[{r}:{r+1}], v1, s[4:7], s{36+dk} offen offset:{1024*tt+h}'))
    if PROF: a('s_waitcnt vmcnt(0)')
    stamp.dump(12, 3)
    a.label('C_done')
    a('s_endpgm')
    return name, a.maxv + 1, a.maxs + 1

def gen_final(a):
    name = 'final_kernel'
    kstart(a, name)
    a('s_cmp_ge_u32 s2, 576')
    a('s_cbranch_scc1 D_done')
    stamp = Stamps(a, 3)
    stamp()
    if PROF:
        a('v_lshrrev_b32 v1, 6, v0')
        a('v_readfirstlane_b32 s75, v1')
    a(f's_load_dwordx2 s[20:21], s[0:1], {KA["ws"]}')
    a(f's_load_dwordx2 s[22:23], s[0:1], {KA["b2"]}')
    a(f's_load_dwordx2 s[24:25], s[0:1], {KA["out"]}')
    a('v_lshlrev_b32 v1, 4, v0')
    a('s_lshl_b32 s3, s2, 12')
    a(f's_mul_hi_u32 s26, s2, {(2**32 + 17) // 18}')
    a('s_mul_i32 s27, s26, 18')
    a('s_sub_u32 s27, s2, s27')
    a('v_bfe_u32 v7, v0, 4, 2')
    a('s_waitcnt lgkmcnt(0)')
    srd(a, 4, 20, SZ['ws']); srd(a, 8, 22, SZ['b2']); srd(a, 12, 24, SZ['out'])
    stamp()
    a(f's_add_u32 s28, s3, {WS_PART}')
    for s in range(8):
        a(f'buffer_load_dwordx4 v[{10+4*s}:{13+4*s}], v1, s[4:7], s28 offen')
        if s < 7: a(f's_add_u32 s28, s28, {PSZ}')
    a(f's_add_u32 s28, s3, {WS_XF}')
    a('buffer_load_dwordx4 v[42:45], v1, s[4:7], s28 offen')
    a('v_lshlrev_b32 v2, 4, v7')
    a('s_lshl_b32 s29, s27, 7')
    a(f's_add_u32 s29, s29, {WS_MOD + 5*2304}')
    a('buffer_load_dwordx4 v[46:49], v2, s[4:7], s29 offen')
    a('buffer_load_dwordx4 v[50:53], v2, s[4:7], s29 offen offset:64')
    a('v_lshlrev_b32 v3, 3, v7')
    a('s_lshl_b32 s29, s27, 6')
    a('buffer_load_dwordx2 v[54:55], v3, s[8:11], s29 offen')
    a('buffer_load_dwordx2 v[56:57], v3, s[8:11], s29 offen offset:32')
    a('v_lshrrev_b32 v4, 6, v0')
    a('v_and_b32 v5, 15, v0')
    a('v_lshl_add_u32 v4, v4, 4, v5')
    a('v_mul_u32_u24 v4, 1152, v4')
    a('v_and_b32 v5, 1, v7')
    a('v_lshl_add_u32 v4, v5, 5, v4')
    a('v_lshrrev_b32 v5, 1, v7')
    a('v_lshl_add_u32 v4, v5, 4, v4')
    a('s_mul_i32 s30, s26, 73728')
    a('s_lshl_b32 s29, s27, 6')
    a('s_add_u32 s30, s30, s29')
    S = 60
    stamp()
    a('s_waitcnt vmcnt(12)')
    stamp()
    for j in range(4): unpack(a, S + 2*j, S + 2*j + 1, 10 + j)
    for s in range(1, 8):
        a(f's_waitcnt vmcnt({12-s})')
        for j in range(4):
            unpack(a, 68, 69, 10 + 4*s + j)
            a(f'v_add_f32 v{S+2*j}, v{S+2*j}, v68')
            a(f'v_add_f32 v{S+2*j+1}, v{S+2*j+1}, v69')
    a('s_waitcnt vmcnt(0)')
    for j in range(4):
        x0, x1 = S + 2*j, S + 2*j + 1
        a(f'v_cvt_pk_bf16_f32 v70, v{x0}, v{x1}')
        unpack(a, x0, x1, 70)
        unpack(a, 68, 69, 54 + j)
        a(f'v_add_f32 v{x0}, v{x0}, v68')
        a(f'v_add_f32 v{x1}, v{x1}, v69')
        a(f'v_cvt_pk_bf16_f32 v70, v{x0}, v{x1}')
        unpack(a, x0, x1, 70)
        a(f'v_mul_f32 v{x0}, v{x0}, v{46+2*j}')
        a(f'v_mul_f32 v{x1}, v{x1}, v{47+2*j}')
        a(f'v_cvt_pk_bf16_f32 v70, v{x0}, v{x1}')
        unpack(a, x0, x1, 70)
        unpack(a, 68, 69, 42 + j)
        a(f'v_add_f32 v{x0}, v{x0}, v68')
        a(f'v_add_f32 v{x1}, v{x1}, v69')
        a(f'v_cvt_pk_bf16_f32 v{72+j}, v{x0}, v{x1}')
    a('v_permlane16_swap_b32 v72, v74')
    a('v_permlane16_swap_b32 v73, v75')
    a('buffer_store_dwordx4 v[72:75], v4, s[12:15], s30 offen')
    stamp()
    if PROF: a('s_waitcnt vmcnt(0)')
    stamp.dump(4, 75)
    a.label('D_done')
    a('s_endpgm')
    return name, a.maxv + 1, a.maxs + 1

def main(out):
    a = Asm()
    hdr = open(f'cdna_kernels/{NAME}.s.ref').read().split('\n')
    head = [l for l in hdr if l.startswith(';') and '@launch' not in l and 'Override' not in l and 'grid=ceil' not in l]
    ks = []
    body = Asm()
    for g in (gen_prep, gen_conv, gen_mlp, gen_final):
        ks.append(g(body))
    launches = [
        f'; @launch kernel=prep_kernel grid=({A_END},1,1) block=(256,1,1) lds={A_LDS}',
        f'; @launch kernel=conv_kernel grid=(576,1,1) block=(64,1,1) lds={B_LDS}',
        f'; @launch kernel=mlp_kernel grid=(256,1,1) block=(768,1,1) lds={C_LDS}',
        f'; @launch kernel=final_kernel grid=(576,1,1) block=(256,1,1) lds=0',
    ]
    txt = '\n'.join(head + launches) + '\n.amdgcn_target "amdgcn-amd-amdhsa--gfx950"\n.text\n' + body.text()
    txt += '.section .rodata,"a"\n'
    for n, nv, ns in ks:
        txt += '.p2align 6\n' + kdesc(n, nv, max(ns, 16))
        print(n, 'vgpr', nv, 'sgpr', ns, file=sys.stderr)
    print('nops', body.nops, 'lines', len(body.lines), file=sys.stderr)
    open(out, 'w').write(txt)

if __name__ == '__main__':
    main(sys.argv[1] if len(sys.argv) > 1 else f'cdna_kernels/{NAME}.s')
```

```python
import re

TRANS = ('v_exp_f32', 'v_log_f32', 'v_rcp_f32', 'v_rsq_f32', 'v_sqrt_f32', 'v_sin_f32', 'v_cos_f32', 'v_rcp_iflag_f32')
_REG = re.compile(r'(?<![\w.])([vas])(?:\[(\d+):(\d+)\]|(\d+))(?![\w])')

def regs_of(tok):
    out = set()
    t = tok.strip()
    for m in _REG.finditer(t):
        k = m.group(1)
        if m.group(4) is not None:
            out.add((k, int(m.group(4))))
        else:
            for i in range(int(m.group(2)), int(m.group(3)) + 1):
                out.add((k, i))
    if re.search(r'\bvcc(_lo|_hi)?\b', t): out.add(('vcc', 0))
    if re.search(r'\bexec(_lo|_hi)?\b', t): out.add(('exec', 0))
    if re.search(r'\bm0\b', t): out.add(('m0', 0))
    return out

def split_ops(s):
    ops, depth, cur = [], 0, ''
    for ch in s:
        if ch in '[(': depth += 1
        if ch in '])': depth -= 1
        if ch == ',' and depth == 0:
            ops.append(cur.strip()); cur = ''
        else:
            cur += ch
    if cur.strip(): ops.append(cur.strip())
    return ops

def mfma_info(op):
    if op.startswith('v_mfma_f32_16x16x4_f32'): return ('sgemm', 8)
    if op.startswith('v_mfma_f32_32x32x2_f32'): return ('sgemm', 16)
    if '32x32x16' in op: return ('xdl', 8)
    if '16x16x32' in op: return ('xdl', 4)
    raise ValueError(op)

class Ins:
    __slots__ = ('op', 'text', 'cls', 'wr', 'rd', 'A', 'B', 'C', 'kind', 'passes', 'dpp', 'states', 'wide_store', 'data')

def parse(line):
    line = line.split(';')[0].strip()
    parts = line.split(None, 1)
    op = parts[0]
    rest = parts[1] if len(parts) > 1 else ''
    I = Ins(); I.op = op; I.text = line; I.wr = set(); I.rd = set(); I.A = I.B = I.C = set()
    I.kind = None; I.passes = 0; I.dpp = False; I.states = 1; I.wide_store = False; I.data = set()
    mo = re.search(r'\boffset:(\d+)', rest)
    if mo:
        lim = 4095 if op.startswith('buffer_') else (65535 if op.startswith('ds_') else (1 << 20) - 1)
        assert int(mo.group(1)) <= lim, 'offset too large: ' + line
    if op.startswith('v_pk_'):
        assert 'op_sel:' not in rest, 'avoid op_sel (lo lane reading a hi register) on packed fp32: ' + line
    ops = split_ops(rest)
    if op == 's_nop':
        I.cls = 'salu'; I.states = int(rest, 0) + 1; return I
    if op.startswith('v_mfma'):
        I.cls = 'mfma'; I.kind, I.passes = mfma_info(op)
        I.wr = regs_of(ops[0]); I.A = regs_of(ops[1]); I.B = regs_of(ops[2]); I.C = regs_of(ops[3].split()[0])
        I.rd = I.A | I.B | I.C
        return I
    if op.startswith('v_'):
        I.cls = 'valu'
        I.dpp = ('_dpp' in op) or ('quad_perm' in rest) or ('row_' in rest) or ('wave_' in rest)
        base = op.replace('_e32', '').replace('_e64', '').replace('_dpp', '').replace('_sdwa', '')
        first = [o.split()[0] if i == len(ops) - 1 and not o.startswith('-') and not o.startswith('abs') else o for i, o in enumerate(ops)]
        if base == 'v_nop': return I
        if base.startswith('v_permlane') and 'swap' in base:
            I.wr = regs_of(ops[0]) | regs_of(ops[1]); I.rd = set(I.wr); return I
        I.wr = regs_of(ops[0])
        srcs = ops[1:]
        if base in ('v_add_co_u32', 'v_sub_co_u32', 'v_subrev_co_u32', 'v_addc_co_u32', 'v_subb_co_u32', 'v_div_scale_f32', 'v_mad_u64_u32'):
            I.wr |= regs_of(ops[1]); srcs = ops[2:]
        for o in srcs: I.rd |= regs_of(o)
        if base.startswith('v_fmac') or base.startswith('v_dot2c') or base.startswith('v_pk_fmac') or base == 'v_writelane_b32':
            I.rd |= regs_of(ops[0])
        if base.startswith('v_cmpx'): I.wr.add(('exec', 0))
        if I.dpp and ('bound_ctrl' not in rest or 'row_mask:0xf' not in rest or 'bank_mask:0xf' not in rest):
            I.rd |= regs_of(ops[0])
        return I
    if op.startswith('buffer_') or op.startswith('global_'):
        I.cls = 'vmem'
        lds = bool(re.search(r'\blds\b', rest)) or '_lds_' in op
        if 'load' in op:
            if lds:
                for o in ops: I.rd |= regs_of(o)
                I.rd.add(('m0', 0)); I.kind = 'ldsdma'
            else:
                I.wr = regs_of(ops[0])
                for o in ops[1:]: I.rd |= regs_of(o)
        elif 'store' in op or 'atomic' in op:
            for o in ops: I.rd |= regs_of(o)
            d = ops[0] if op.startswith('buffer_') else ops[1]
            I.data = regs_of(d)
            I.wide_store = ('x3' in op or 'x4' in op)
            if 'atomic' in op and 'sc0' in rest: I.wr = regs_of(ops[0])
        else:
            pass
        return I
    if op.startswith('ds_'):
        I.cls = 'ds'
        if op.startswith('ds_read') or op.startswith('ds_bpermute') or op.startswith('ds_permute') or op.startswith('ds_swizzle') or '_rtn' in op:
            I.wr = regs_of(ops[0])
            for o in ops[1:]: I.rd |= regs_of(o)
        else:
            for o in ops: I.rd |= regs_of(o)
        return I
    if op.startswith('s_'):
        I.cls = 'salu'
        if op.startswith('s_cmp') or op.startswith('s_cbranch') or op.startswith('s_branch') or op in ('s_waitcnt', 's_barrier', 's_endpgm', 's_sleep', 's_setprio', 's_bitcmp1_b32', 's_bitcmp0_b32'):
            for o in ops: I.rd |= regs_of(o)
        else:
            if ops: I.wr = regs_of(ops[0])
            for o in ops[1:]: I.rd |= regs_of(o)
            if 'saveexec' in op: I.wr.add(('exec', 0))
        return I
    raise ValueError('cannot parse: ' + line)

def is_vg(r): return r[0] in ('v', 'a')
def is_sg(r): return r[0] in ('s', 'vcc')

def need(prev, cur):
    n = 0
    pb = prev.op.replace('_e32', '').replace('_e64', '')
    cb = cur.op.replace('_e32', '').replace('_e64', '')
    if prev.cls == 'valu':
        wv = {r for r in prev.wr if is_vg(r)}
        ws = {r for r in prev.wr if is_sg(r)}
        if cur.cls == 'mfma' and (wv & cur.rd): n = max(n, 2)
        if cur.cls == 'mfma' and ('exec', 0) in prev.wr: n = max(n, 4)
        if cur.cls == 'valu':
            if pb in TRANS and cb not in TRANS and (wv & cur.rd): n = max(n, 1)
            if cur.dpp and (wv & cur.rd): n = max(n, 2)
            if cur.dpp and ('exec', 0) in prev.wr: n = max(n, 5)
            if cb.startswith('v_permlane') and (wv & cur.rd): n = max(n, 2)
            if cb in ('v_readfirstlane_b32', 'v_readlane_b32') and (wv & cur.rd): n = max(n, 1)
            if ws & cur.rd: n = max(n, 4 if cb in ('v_readlane_b32', 'v_writelane_b32', 'v_div_fmas_f32') else 2)
            if pb.startswith('v_pk_') and (wv & (cur.rd | cur.wr)): n = max(n, 1)
            if ('sdwa' in prev.op and 'dst_sel:DWORD' not in prev.text) and (wv & (cur.rd | cur.wr)): n = max(n, 1)
            if pb.startswith('v_dot'):
                if cb == pb:
                    ops = split_ops(cur.text.split(None, 1)[1])
                    ab = regs_of(ops[1]) | regs_of(ops[2])
                    if wv & ab: n = max(n, 3)
                elif wv & (cur.rd | cur.wr): n = max(n, 3)
        if pb.startswith('v_dot') and cur.cls in ('vmem', 'ds', 'mfma') and (wv & (cur.rd | cur.wr)): n = max(n, 3)
        if cur.cls == 'vmem' and (ws & cur.rd): n = max(n, 5)
        if cur.cls == 'salu' and (ws & cur.rd): n = max(n, 1)
    if prev.cls == 'mfma':
        p = prev.passes
        D = prev.wr
        if prev.kind == 'xdl':
            tv = {2: 5, 4: 8, 8: 12, 16: 20}[p]; tc = {2: 4, 4: 6, 8: 10, 16: 18}[p]; war = {2: 1, 4: 3, 8: 7, 16: 15}[p]
        else:
            tv = {2: 4, 4: 6, 8: 10, 16: 18}[p]; tc = {2: 2, 4: 4, 8: 8, 16: 16}[p]; war = 0
        if cur.cls == 'mfma':
            if D & (cur.A | cur.B): n = max(n, tv)
            if D & cur.C:
                if not (cur.C == D and cur.passes == p and cur.kind == prev.kind): n = max(n, tc)
            elif D & cur.wr: n = max(n, tv)
        elif cur.cls in ('valu', 'vmem', 'ds'):
            if D & (cur.rd | cur.wr): n = max(n, tv)
            if cur.cls == 'valu' and war and (prev.C & cur.wr): n = max(n, war)
    if prev.cls == 'vmem' and prev.wide_store:
        if prev.data & cur.wr: n = max(n, 2 if cur.cls in ('valu', 'mfma') else 1)
    if prev.cls == 'salu' and ('m0', 0) in prev.wr and cur.kind == 'ldsdma': n = max(n, 1)
    return n

class Asm:
    def __init__(self):
        self.lines = []
        self.hist = []
        self.nops = 0
        self.maxv = -1; self.maxs = -1; self.maxa = -1
        self.uid = 0
        self.quad = None
        self.shadow = {}; self.fresh = set()
        self.qbar = None
    def raw(self, s): self.lines.append(s)
    def comment(self, s): self.lines.append('    ; ' + s)
    def label(self, name):
        self.lines.append(name + ':')
        self.fresh = set()
    def newlabel(self, pfx='L'):
        self.uid += 1; return f'{pfx}_{self.uid}'
    def reset_stats(self):
        self.maxv = self.maxs = self.maxa = -1; self.hist = []
    def __call__(self, text):
        for line in text.strip().split('\n'):
            line = line.strip()
            if not line or line.startswith(';'):
                continue
            if line.endswith(':'):
                self.label(line[:-1]); continue
            if self.qbar is not None and line == 's_barrier':
                k = self.qbar; self.qbar = None; q = self.quad; self.quad = None
                l = self.newlabel('qb')
                self('s_waitcnt lgkmcnt(0)\ns_mov_b64 exec, 1')
                self(f'ds_add_u32 v160, v161 offset:{4*k}')
                self('s_mov_b64 exec, -1')
                self.label(l)
                self(f'ds_read_b32 v162, v160 offset:{4*k}')
                self('s_waitcnt lgkmcnt(0)\nv_readfirstlane_b32 s92, v162\ns_cmp_lt_u32 s92, 4')
                self(f's_cbranch_scc1 {l}')
                self.qbar = k + 1; self.quad = q
                continue
            if self.quad is not None:
                line = self._quad(line)
            cur = parse(line)
            if self.quad is not None:
                for r in cur.wr:
                    if r[0] == 'v': self.fresh.discard(r[1])
                if cur.op.startswith('s_cbranch') or cur.op.startswith('s_branch'): self.fresh = set()
            dist = 0; pad = 0
            for prev in reversed(self.hist):
                n = need(prev, cur)
                if n > dist: pad = max(pad, n - dist)
                dist += prev.states
                if dist >= 20: break
            while pad > 0:
                k = min(pad, 16)
                nop = parse(f's_nop {k-1}')
                self.lines.append(f'    s_nop {k-1}')
                self.hist.append(nop); self.nops += 1
                pad -= k
            self.lines.append('    ' + line)
            self.hist.append(cur)
            if len(self.hist) > 40: self.hist = self.hist[-40:]
            if self.quad is not None and cur.cls == 'salu' and ('m0', 0) in cur.wr and not line.endswith(f's{self.quad[1]}'):
                q = self.quad; self.quad = None
                self(f's_add_u32 m0, m0, s{q[1]}')
                self.quad = q
            for r in cur.rd | cur.wr:
                if r[0] == 'v': self.maxv = max(self.maxv, r[1])
                elif r[0] == 's': self.maxs = max(self.maxs, r[1])
                elif r[0] == 'a': self.maxa = max(self.maxa, r[1])
    def _quad(self, line):
        op = line.split()[0]
        if not op.startswith('ds_'): return line
        head, rest = line.split(None, 1)
        ops = split_ops(rest)
        idx = 1 if (op.startswith('ds_read') or '_rtn' in op) else 0
        tok = ops[idx].split()
        m = re.fullmatch(r'v(\d+)', tok[0]); assert m, line
        r = int(m.group(1))
        vb, sb, v0 = self.quad
        if r not in self.shadow: self.shadow[r] = v0 + len(self.shadow)
        sh = self.shadow[r]
        if r not in self.fresh:
            q = self.quad; self.quad = None
            self(f'v_add_u32 v{sh}, v{vb}, v{r}')
            self.quad = q
            self.fresh.add(r)
        tok[0] = f'v{sh}'
        ops[idx] = ' '.join(tok)
        return head + ' ' + ', '.join(ops)
    def text(self): return '\n'.join(self.lines) + '\n'
```

```python
import sys, struct, math, os
sys.path.insert(0, 'dev')
from asmgen import Asm

NAME = 'adaLN_cond__ssm_conv_s4__mixer_channel_mlp__prompt'
def f32(x): return '0x%08x' % struct.unpack('<I', struct.pack('<f', x))[0]
LOG2E = 1.4426950408889634

KA = dict(u=0, Are=8, Aim=16, Bre=24, Bim=32, Cre=40, Cim=48, logdt=56, dskip=64, bx=72, w1=80, b1=88, w2=96, b2=104, c=112, wmod=120, out=128, dbg=136, ws=144)
SZ = dict(u=2359296, Are=147456, Aim=147456, Bre=147456, Bim=147456, Cre=147456, Cim=147456, logdt=1152, dskip=1152, w1=5308416, b1=9216, w2=5308416, b2=1152, c=1152, wmod=3981312, out=2359296, ws=268435456)
WS_MOD  = 0x0000000
WS_MODH = 0x0004000
WS_FLG  = 0x0014000
WS_FL1  = 0x0016000
WS_XT   = 0x0020000
WS_X2T  = 0x0260000
WS_XF   = 0x04A0000
WS_YF   = 0x2300000
WS_W1F  = 0x06E0000
WS_W2F  = 0x0BF0000
WS_PART = 0x1100000
PSZ = 0x240000

WSB = int(os.environ.get('WSB', '0'), 0)
def srd(a, base, ptr, size):
    if size == SZ['ws'] and WSB:
        a(f's_add_u32 s{base}, s{ptr}, {WSB}')
        a(f's_addc_u32 s{base+1}, s{ptr+1}, 0')
        a(f's_and_b32 s{base+1}, s{base+1}, 0xffff')
        size -= WSB
    else:
        a(f's_mov_b32 s{base}, s{ptr}')
        a(f's_and_b32 s{base+1}, s{ptr+1}, 0xffff')
    a(f's_mov_b32 s{base+2}, {size}')
    a(f's_mov_b32 s{base+3}, 0x20000')

def kstart(a, name):
    a.raw(f'.globl {name}')
    a.raw('.p2align 8')
    a.raw(f'.type {name},@function')
    a.raw(f'{name}:')
    a.reset_stats()

def kdesc(name, nv, ns):
    nv = max(nv, 1)
    acc = (nv + 3) // 4 * 4
    return f""".amdhsa_kernel {name}
  .amdhsa_next_free_vgpr {nv}
  .amdhsa_next_free_sgpr {ns}
  .amdhsa_accum_offset {acc}
  .amdhsa_group_segment_fixed_size 0
  .amdhsa_kernarg_size 152
  .amdhsa_user_sgpr_count 2
  .amdhsa_user_sgpr_kernarg_segment_ptr 1
  .amdhsa_system_sgpr_workgroup_id_x 1
.end_amdhsa_kernel
"""

def rb(a, dst, src):
    a(f'v_cvt_pk_bf16_f32 v{dst}, v{src}, v{src}')
    a(f'v_and_b32 v{dst}, 0xffff0000, v{dst}')

def unpack(a, lo, hi, src):
    a(f'v_lshlrev_b32 v{lo}, 16, v{src}')
    a(f'v_and_b32 v{hi}, 0xffff0000, v{src}')

def ln_scalars(a, mean, var, t):
    rb(a, mean, mean)
    rb(a, var, var)
    a(f'v_add_f32 v{var}, {f32(1e-5)}, v{var}')
    rb(a, var, var)
    a(f'v_sqrt_f32 v{var}, v{var}')
    rb(a, var, var)
    a(f'v_rcp_f32 v{var}, v{var}')

import os
PROF = os.environ.get('PROF', '0') == '1'
WS_PROF = 0x2800000
class Stamps:
    def __init__(self, a, kidx): self.a = a; self.n = 0; self.n0 = 0; self.kidx = kidx
    def __call__(self):
        if not PROF: return
        a = self.a
        a('s_waitcnt lgkmcnt(0)')
        a('s_memtime s[78:79]')
        a('s_waitcnt lgkmcnt(0)')
        a(f's_mov_b32 s{80+self.n}, s78')
        if self.n == 0:
            a('s_memrealtime s[78:79]')
            a('s_waitcnt lgkmcnt(0)')
            a('s_mov_b32 s76, s78')
        self.n += 1
    def dump(self, waves_per_wg, wave_sgpr=None, vt=(2, 3)):
        if not PROF: return
        a = self.a
        self()
        a('s_memrealtime s[78:79]')
        a('s_waitcnt lgkmcnt(0)')
        a('s_mov_b32 s77, s78')
        a(f's_mul_i32 s78, s2, {waves_per_wg}')
        if wave_sgpr is not None: a(f's_add_u32 s78, s78, s{wave_sgpr}')
        a('s_lshl_b32 s78, s78, 6')
        a(f's_add_u32 s78, s78, {WS_PROF + self.kidx * 0x100000}')
        a(f'v_mov_b32 v{vt[0]}, 0')
        for i in range(self.n):
            a(f'v_mov_b32 v{vt[1]}, s{80+i}')
            a(f'buffer_store_dword v{vt[1]}, v{vt[0]}, s[4:7], s78 offen offset:{4*i}')
        for i in range(2):
            a(f'v_mov_b32 v{vt[1]}, s{76+i}')
            a(f'buffer_store_dword v{vt[1]}, v{vt[0]}, s[4:7], s78 offen offset:{56+4*i}')
        self.n = self.n0
    def fork(self): self.n0 = self.n

WMODE = os.environ.get('WMODE', 'in')
WSEP = WMODE != 'in'
WCH = int(os.environ.get('WCH', '3'))
WTHR = int(os.environ.get('WTHR', '86'))
WUN = 288
MSPL = os.environ.get('MSPL', '1') == '1'
A_LN0, A_MOD0, A_CV0 = 0, 64, (152 if MSPL else 176)
A_WP0 = A_CV0 + 576
A_END = A_WP0 + (WUN if WMODE == 'sep' else 0)
A_ROLES = [('ln1', 0, 64), ('mod', 64, A_CV0), ('conv', A_CV0, A_WP0)] + ([('wprep', A_WP0, A_END)] if WMODE == 'sep' else [])
WS_MODP = 0xC000
PROF_K = [(2, 3072), (3, 2304)]
M_ROLES = []
TSTR = 1184
WOUT = 'none' if WSEP else os.environ.get('WOUT', 'post')
LIN = os.environ.get('LIN', '0') == '1'
W0 = os.environ.get('W0', '0') == '1' and not LIN and not WSEP
if LIN or W0: WOUT = 'end'
A_LDS = 51264 if WOUT == 'end' else 39680
WS_ST = 0x8000
WST = os.environ.get('WST', 'sc1')
WWAIT = os.environ.get('WWAIT', '0') == '1'
SPIN_MAX = 1 << 20
ONEK = os.environ.get('ONEK', '0') == '1'
WS_FL2 = 0x0017000
HS = 'sc1' if ONEK else ''
W2M = os.environ.get('W2M', '0') == '1'
WS_FW2 = WS_FLG + 4096
NTS = os.environ.get('NTS', '')
ntw = 'nt' if 'w' in NTS else ''
ntm = 'nt' if 'm' in NTS else ''
ntx = 'nt' if 'x' in NTS else ''
ntp = 'nt' if 'p' in NTS else ''

DIAG = os.environ.get('DIAG', '0') == '1'
WS_DG = 0x1F000
def diag(a, slot, cond_sgpr=None, cond_val=None, wave_sgpr=None, wave_val=0):
    if not DIAG: return
    l = a.newlabel('dg')
    a(f's_cmp_lg_u32 s2, {cond_val}')
    a(f's_cbranch_scc1 {l}')
    a(f's_cmp_lg_u32 s{wave_sgpr}, {wave_val}')
    a(f's_cbranch_scc1 {l}')
    a('s_memrealtime s[88:89]')
    a('s_waitcnt lgkmcnt(0)')
    a(f'v_mov_b32 v{DGV}, s88')
    a(f'v_mov_b32 v{DGV+1}, {WS_DG + 4*slot}')
    a(f'buffer_store_dword v{DGV}, v{DGV+1}, s[4:7], 0 offen sc1')
    a.label(l)
DGV = 126

NPROD = 64 + 108
F_CNT, F_GO = 0, 128
def arrive(a, which=0):
    l = a.newlabel('arr')
    n = ((64, 108)[which] if LIN else NPROD)
    o = 64 * which if LIN else 0
    a('v_mov_b32 v1, 0')
    a('v_mov_b32 v2, 1')
    a(f'buffer_atomic_add v2, v1, s[16:19], 0 offen offset:{F_CNT+o} sc0 sc1')
    a('s_waitcnt vmcnt(0)')
    a('v_readfirstlane_b32 s71, v2')
    a('v_mov_b32 v2, 1')
    a(f's_cmp_lg_u32 s71, {n-1}')
    a(f's_cbranch_scc1 {l}')
    a(f'buffer_store_dword v2, v1, s[16:19], 0 offen offset:{F_GO+o} sc1')
    a.label(l)

TAG = os.environ.get('TAG', '2') != '0'
COLL = os.environ.get('TAG', '2') == '2'
def tag_fetch(a, v):
    if TAG:
        a(f'v_mov_b32 v{v}, 0')
        a(f'buffer_load_dword v{v}, v{v}, s[16:19], 0 offen sc1')

def arrive_tag(a, v):
    lp, ld = a.newlabel('tg'), a.newlabel('tgd')
    a('v_mov_b32 v1, 0')
    a(f's_mov_b32 s70, {SPIN_MAX}')
    a.label(lp)
    a(f'v_readfirstlane_b32 s71, v{v}')
    a('s_cmp_lg_u32 s71, 0')
    a(f's_cbranch_scc1 {ld}')
    a('s_sub_u32 s70, s70, 1')
    a('s_cmp_eq_u32 s70, 0')
    a(f's_cbranch_scc1 {ld}')
    a(f'buffer_load_dword v{v}, v1, s[16:19], 0 offen sc1')
    a('s_waitcnt vmcnt(0)')
    a(f's_branch {lp}')
    a.label(ld)
    a('s_lshl_b32 s71, s2, 2')
    a(f's_add_u32 s71, s71, {WS_FL1}')
    a(f'buffer_store_dword v{v}, v1, s[4:7], s71 offen sc1')

def wait_tags(a, wave_sgpr, bar=True):
    ld = a.newlabel('go'); lp = a.newlabel('poll')
    a(f's_cmp_lg_u32 s{wave_sgpr}, 0')
    a(f's_cbranch_scc1 {ld}')
    a(f's_mov_b32 s70, {SPIN_MAX}')
    a('v_mov_b32 v2, 0')
    if MSPL:
        a('v_min_u32 v11, 58, v7')
        a('v_lshlrev_b32 v11, 3, v11')
    else:
        a('v_min_u32 v11, 42, v7')
        a('v_lshlrev_b32 v11, 4, v11')
    a(f's_mov_b32 s71, {WS_FL1}')
    a.label(lp)
    a('buffer_load_dword v10, v2, s[16:19], 0 offen sc1')
    if MSPL:
        a('buffer_load_dwordx2 v[12:13], v11, s[4:7], s71 offen sc1')
        a('s_waitcnt vmcnt(0)')
        for r in range(12, 14): a(f'v_xor_b32 v{r}, v{r}, v10')
        a('v_or_b32 v12, v12, v13')
    else:
        a('buffer_load_dwordx4 v[12:15], v11, s[4:7], s71 offen sc1')
        a('s_waitcnt vmcnt(0)')
        for r in range(12, 16): a(f'v_xor_b32 v{r}, v{r}, v10')
        a('v_or3_b32 v12, v12, v13, v14')
        a('v_or_b32 v12, v12, v15')
    a('v_cmp_eq_u32 vcc, 0, v10')
    a('v_cndmask_b32 v12, v12, 1, vcc')
    a('v_cmp_ne_u32 vcc, 0, v12')
    a(f's_cbranch_vccz {ld}')
    a('s_sub_u32 s70, s70, 1')
    a('s_cmp_eq_u32 s70, 0')
    a(f's_cbranch_scc1 {ld}')
    a(f's_sleep {os.environ.get("SLP", "4")}')
    a(f's_branch {lp}')
    a.label(ld)
    if bar: a('s_barrier')

def signal(a):
    a('s_waitcnt vmcnt(0)')
    a('s_barrier')
    l = a.newlabel('sig')
    a('s_cmp_lg_u32 s75, 0')
    a(f's_cbranch_scc1 {l}')
    a('s_mov_b64 exec, 1')
    if TAG: arrive_tag(a, 9)
    else: arrive(a)
    a('s_mov_b64 exec, -1')
    a.label(l)

def wait_flags(a, wave_sgpr, conds, vz, vt):
    ld = a.newlabel('go'); lp = a.newlabel('poll')
    a(f's_cmp_lg_u32 s{wave_sgpr}, 0')
    a(f's_cbranch_scc1 {ld}')
    a(f's_mov_b32 s70, {SPIN_MAX}')
    a.label(lp)
    for j, (off, tgt) in enumerate(conds):
        a(f'buffer_load_dword v{vt+j}, v{vz}, s[16:19], 0 offen offset:{off} sc1')
    a('s_waitcnt vmcnt(0)')
    ls = a.newlabel('slp')
    for j, (off, tgt) in enumerate(conds):
        a(f'v_readfirstlane_b32 s71, v{vt+j}')
        a(f's_cmp_lt_u32 s71, {tgt}')
        a(f's_cbranch_scc1 {ls}')
    a(f's_branch {ld}')
    a.label(ls)
    a('s_sub_u32 s70, s70, 1')
    a('s_cmp_eq_u32 s70, 0')
    a(f's_cbranch_scc1 {ld}')
    a(f's_sleep {os.environ.get("SLP", "4")}')
    a(f's_branch {lp}')
    a.label(ld)
    a('s_barrier')


def gen_prep(a):
    name = NAME + '_kernel' if ONEK else 'front_kernel'
    kstart(a, name)
    if ONEK:
        a.raw('front_kernel:')
        a('s_cmp_ge_u32 s2, 256')
        a('s_cbranch_scc1 C_done')
        a('v_mov_b32 v131, v0')
        a('v_mov_b32 v129, s2')
        a('v_lshrrev_b32 v1, 8, v0')
        a('v_and_b32 v0, 255, v0')
        a('v_readfirstlane_b32 s3, v1')
        a(f'v_mul_u32_u24 v130, {A_LDS}, v1')
        a(f's_mul_i32 s93, s3, {A_LDS}')
        a(f'v_lshlrev_b32 v160, 5, v1')
        a(f'v_add_u32 v160, {3*A_LDS}, v160')
        a('v_mov_b32 v161, 0')
        a('ds_write_b32 v160, v161')
        a('ds_write_b32 v160, v161 offset:4')
        a('ds_write_b32 v160, v161 offset:8')
        a('v_mov_b32 v161, 1')
        a('s_min_u32 s25, s2, 55')
        a('s_add_u32 s25, s25, 64')
        a('s_add_u32 s26, s2, 120')
        a('s_cmp_ge_u32 s2, 27')
        a('s_cselect_b32 s26, 119, s26')
        a('s_cmp_eq_u32 s3, 2')
        a('s_cselect_b32 s25, s26, s25')
        a('s_cmp_eq_u32 s3, 0')
        a('s_cselect_b32 s25, s2, s25')
        a('s_sub_u32 s26, s2, 64')
        a('s_lshr_b32 s26, s26, 3')
        a('s_mul_i32 s26, s26, 3')
        a('s_add_u32 s26, s26, s3')
        a('s_lshl_b32 s26, s26, 3')
        a('s_and_b32 s27, s2, 7')
        a('s_add_u32 s26, s26, s27')
        a(f's_add_u32 s26, s26, {A_CV0}')
        a('s_cmp_ge_u32 s2, 64')
        a('s_cselect_b32 s2, s26, s25')
        a('s_waitcnt lgkmcnt(0)')
        a('s_barrier')
        a.quad = (130, 93, 132)
    else:
        a(f's_cmp_ge_u32 s2, {A_END}')
        a('s_cbranch_scc1 A_done')
    stamp = Stamps(a, 0)
    stamp(); stamp.fork()
    if DIAG:
        a('s_memrealtime s[86:87]')
    CPF = os.environ.get('CPF', '1')
    def cpf():
        a('s_getpc_b64 s[28:29]')
        a.label('A_pc')
        a('s_sub_u32 s28, s28, A_pc - front_kernel')
        a('s_subb_u32 s29, s29, 0')
        a('v_min_u32 v2, (text_end - front_kernel - 4) / 128, v0')
        a('v_lshlrev_b32 v2, 7, v2')
        a('global_load_dword v125, v2, s[28:29]')
        if os.environ.get('KDPF', '0') == '1':
            a('s_getpc_b64 s[28:29]')
            a('s_add_u32 s28, s28, kd_here@rel32@lo+4')
            a('s_addc_u32 s29, s29, kd_here@rel32@hi+12')
            a('v_mov_b32 v2, 0')
            a('global_load_dword v124, v2, s[28:29]')
    a(f's_load_dwordx4 s[20:23], s[0:1], {KA["dbg"]}')
    if CPF == '2':
        a(f's_cmp_ge_u32 s2, {os.environ.get("CPFN", "64")}')
        a('s_cbranch_scc1 A_nocpf')
        cpf()
        a.label('A_nocpf')
    a('v_lshrrev_b32 v8, 6, v0')
    a('v_readfirstlane_b32 s75, v8')
    a('v_and_b32 v7, 63, v0')
    def fin():
        if PROF:
            stamp()
            a('s_waitcnt vmcnt(0)')
        stamp.dump(4, 75)
        a('s_branch A_done' if ONEK else 's_endpgm')
    def srds():
        srd(a, 4, 22, SZ['ws']); srd(a, 16, 20, 256)
    if WMODE == 'sep':
        a(f's_cmp_ge_u32 s2, {A_WP0}')
        a('s_cbranch_scc1 A_wprep')
    a(f's_cmp_ge_u32 s2, {A_CV0}')
    a('s_cbranch_scc1 A_conv')
    a(f's_cmp_ge_u32 s2, {A_MOD0}')
    a('s_cbranch_scc1 A_mod')
    if ONEK: a.qbar = 0
    a(f's_load_dwordx2 s[26:27], s[0:1], {KA["u"]}')
    a('s_mul_i32 s24, s2, 36864')
    a('v_lshrrev_b32 v5, 3, v0')
    a('v_and_b32 v6, 7, v0')
    a('v_mul_u32_u24 v1, 1152, v5')
    a('v_lshl_add_u32 v1, v6, 4, v1')
    a('s_waitcnt lgkmcnt(0)')
    srd(a, 8, 26, SZ['u'])
    for i in range(9):
        a(f'buffer_load_dwordx4 v[{10+4*i}:{13+4*i}], v1, s[8:11], s24 offen offset:{128*i} {ntx}')
    srds()
    if TAG:
        a('s_or_b32 s25, s2, s75')
        a('s_cmp_lg_u32 s25, 0')
        a('s_cbranch_scc1 A_notag')
        a('s_memrealtime s[68:69]')
        a('v_mov_b32 v2, 0')
        a('s_waitcnt lgkmcnt(0)')
        a('s_or_b32 s68, s68, 1')
        a('v_mov_b32 v3, s68')
        a('buffer_store_dword v3, v2, s[16:19], 0 offen sc1')
        a.label('A_notag')
    if CPF == '1': cpf()
    a('v_and_b32 v2, 31, v0')
    a('v_lshlrev_b32 v2, 2, v2')
    a('v_mov_b32 v3, 0')
    a('s_lshl_b32 s25, s2, 7')
    a(f's_add_u32 s25, s25, {WS_FLG}')
    a(f'buffer_store_dword v3, v2, s[4:7], s25 offen {HS}')
    diag(a, 0, 2, 5, 75)
    if DIAG:
        a('s_cmp_lg_u32 s2, 5')
        a('s_cbranch_scc1 dg_e')
        a('v_mov_b32 v126, s86')
        a(f'v_mov_b32 v127, {WS_DG + 4*14}')
        a('buffer_store_dword v126, v127, s[4:7], 0 offen sc1')
        a.label('dg_e')
    stamp()
    a(f'v_mul_u32_u24 v2, {TSTR}, v5')
    a('v_lshl_add_u32 v2, v6, 4, v2')
    a('v_lshrrev_b32 v9, 4, v7')
    a('v_bfe_u32 v46, v7, 2, 2')
    a('v_lshl_add_u32 v46, v9, 3, v46')
    a(f'v_mul_u32_u24 v3, {TSTR}, v46')
    a('v_and_b32 v46, 3, v7')
    a('v_lshl_add_u32 v3, v46, 3, v3')
    a('v_lshl_add_u32 v3, v8, 5, v3')
    a('v_and_b32 v46, 15, v7')
    a('v_lshlrev_b32 v4, 6, v46')
    a('v_lshl_add_u32 v4, v9, 4, v4')
    a('v_lshl_add_u32 v4, v8, 10, v4')
    a('s_mov_b32 s25, 0x3f803f80')
    for r in range(46, 50): a(f'v_mov_b32 v{r}, 0')
    for i in range(9):
        a(f's_waitcnt vmcnt({9-i + (CPF == "1") * (1 + (os.environ.get("KDPF", "0") == "1"))})')
        a(f'ds_write_b128 v2, v[{10+4*i}:{13+4*i}] offset:{128*i}')
        for j in range(4):
            a(f'v_dot2_f32_bf16 v{46+(j&1)}, v{10+4*i+j}, s25, v{46+(j&1)}')
        for j in range(4):
            a(f'v_dot2_f32_bf16 v{48+(j&1)}, v{10+4*i+j}, v{10+4*i+j}, v{48+(j&1)}')
    a('s_waitcnt lgkmcnt(0)')
    a('s_barrier')
    diag(a, 1, 2, 5, 75)
    stamp()
    for k in range(9):
        a(f'ds_read_b64_tr_b16 v[{50+4*k}:{51+4*k}], v3 offset:{128*k}')
        a(f'ds_read_b64_tr_b16 v[{52+4*k}:{53+4*k}], v3 offset:{128*k+4*TSTR}')
    a('v_add_f32 v46, v46, v47')
    a('v_add_f32 v47, v48, v49')
    for m in ('quad_perm:[1,0,3,2]', 'quad_perm:[2,3,0,1]', 'row_half_mirror'):
        a(f'v_add_f32_dpp v46, v46, v46 {m} row_mask:0xf bank_mask:0xf')
        a(f'v_add_f32_dpp v47, v47, v47 {m} row_mask:0xf bank_mask:0xf')
    a(f'v_mul_f32 v46, {f32(1/576)}, v46')
    a(f'v_mul_f32 v47, {f32(1/576)}, v47')
    a('v_fma_f32 v47, -v46, v46, v47')
    a('v_max_f32 v47, 0, v47')
    rb(a, 47, 47)
    a(f'v_add_f32 v47, {f32(1e-5)}, v47')
    rb(a, 47, 47)
    a('v_sqrt_f32 v47, v47')
    a('v_cvt_pk_bf16_f32 v46, v47, v46')
    a('v_lshlrev_b32 v48, 2, v5')
    a('s_lshl_b32 s25, s2, 7')
    a(f's_add_u32 s25, s25, {WS_ST}')
    a('v_cmp_eq_u32 vcc, 0, v6')
    a('s_and_saveexec_b64 s[68:69], vcc')
    a('buffer_store_dword v46, v48, s[4:7], s25 offen sc1')
    a('s_mov_b64 exec, -1')
    tag_fetch(a, 9)
    a(f's_add_u32 s25, s24, {WS_XT}')
    for k in range(9):
        a(f's_waitcnt lgkmcnt({min(15, 16-2*k)})')
        a(f'buffer_store_dwordx4 v[{50+4*k}:{53+4*k}], v4, s[4:7], s25 offen sc1')
        if k < 8: a('s_add_u32 s25, s25, 4096')

    stamp()
    signal(a)
    diag(a, 2, 2, 5, 75)
    if WMODE == 'prod':
        stamp()
        a('s_mov_b32 s91, s2')
        a('s_branch A_wloop')
        stamp.n = stamp.n0
    else: fin()

    a.label('A_mod')
    if ONEK: a.qbar = 0
    a(f's_sub_u32 s3, s2, {A_MOD0}')
    if MSPL:
        a('s_sub_u32 s40, s3, 54')
        a('s_cmp_lt_u32 s40, 2')
        a('s_cbranch_scc1 A_coll')
        a('s_cmp_ge_u32 s3, 83')
        a('s_cbranch_scc1 A_done')
        a(f's_load_dwordx4 s[24:27], s[0:1], {KA["c"]}')
        a('v_lshrrev_b32 v5, 3, v0')
        a('v_and_b32 v6, 7, v0')
        a('v_mul_u32_u24 v1, 6912, v5')
        a('v_lshl_add_u32 v1, v6, 4, v1')
        a('s_and_b32 s30, s3, 1')
        a('s_lshr_b32 s41, s3, 1')
        a('s_sub_u32 s40, s3, 29')
        a('s_cmp_ge_u32 s3, 56')
        a('s_cselect_b32 s3, s40, s41')
        a('s_cselect_b32 s30, 0, s30')
        a('s_cselect_b32 s40, 2, 1')
        a('s_mov_b32 s41, s40')
        a('s_lshl_b32 s28, s3, 7')
        a('s_mul_i32 s29, s30, 1990656')
        a('s_add_u32 s28, s28, s29')
        a('s_mul_i32 s31, s30, 576')
        for j in range(8): a(f'v_mov_b32 v{110+j}, 0')
        a('v_mov_b32 v2, 0')
        a('s_waitcnt lgkmcnt(0)')
        srd(a, 8, 26, SZ['wmod']); srd(a, 12, 24, SZ['c'])
        srds()
        if os.environ.get('MBW', '0') == '1':
            a('s_cmp_eq_u32 s40, 1')
            a('s_cbranch_scc1 A_mgo')
            wait_flags(a, 75, [(F_GO, 1)], 2, 10)
            a.label('A_mgo')
        a('v_lshlrev_b32 v2, 1, v5')
        NK = 9
        CV = [70 + 2*k for k in range(NK)]
        a.label('A_mpass')
        for k in range(NK):
            a(f'buffer_load_dwordx4 v[{10+4*k}:{13+4*k}], v1, s[8:11], s28 offen')
            a('s_add_u32 s28, s28, 221184')
        for k in range(NK):
            a(f'buffer_load_ushort v{CV[k]}, v2, s[12:15], s31 offen offset:{64*k}')
        a('s_add_u32 s31, s31, 576')
        stamp()
        a('s_waitcnt vmcnt(0)')
        for k in range(NK):
            a(f'v_lshlrev_b32 v{CV[k]}, 16, v{CV[k]}')
            a(f'v_mul_f32 v{100+k}, {f32(-LOG2E)}, v{CV[k]}')
        for k in range(NK): a(f'v_exp_f32 v{100+k}, v{100+k}')
        for k in range(NK): a(f'v_add_f32 v{100+k}, 1.0, v{100+k}')
        for k in range(NK): a(f'v_rcp_f32 v{100+k}, v{100+k}')
        for k in range(NK): a(f'v_mul_f32 v{CV[k]}, v{CV[k]}, v{100+k}')
        for k in range(NK): rb(a, CV[k], CV[k])
        stamp()
        for k in range(NK):
            cp = CV[k]
            for j in range(4): unpack(a, 50 + 2*j, 51 + 2*j, 10 + 4*k + j)
            for j in range(4):
                t = 50 + 2*j
                a(f'v_pk_fma_f32 v[{110+2*j}:{111+2*j}], v[{t}:{t+1}], v[{cp}:{cp+1}], v[{110+2*j}:{111+2*j}] op_sel_hi:[1,0,1]')
        a('s_sub_u32 s41, s41, 1')
        a('s_cmp_lg_u32 s41, 0')
        a('s_cbranch_scc1 A_mpass')
    else:
        a('s_cmp_ge_u32 s3, 108')
        a(f's_cbranch_scc1 {"A_coll" if COLL else "A_done"}')
        a(f's_load_dwordx4 s[24:27], s[0:1], {KA["c"]}')
        a('v_lshrrev_b32 v5, 3, v0')
        a('v_and_b32 v6, 7, v0')
        a('v_mul_u32_u24 v1, 6912, v5')
        a('v_lshl_add_u32 v1, v6, 4, v1')
        a('v_lshlrev_b32 v2, 1, v5')
        a('s_and_b32 s30, s3, 1')
        a('s_lshr_b32 s3, s3, 1')
        a('s_lshl_b32 s28, s3, 7')
        a('s_mul_i32 s29, s30, 1990656')
        a('s_add_u32 s28, s28, s29')
        a('s_mul_i32 s31, s30, 576')
        a('s_waitcnt lgkmcnt(0)')
        srd(a, 8, 26, SZ['wmod']); srd(a, 12, 24, SZ['c'])
        NK = 9
        MODC = os.environ.get('MODC', '1' if LIN else '0') == '1'
        def wl():
            for k in range(NK):
                a(f'buffer_load_dwordx4 v[{10+4*k}:{13+4*k}], v1, s[8:11], s28 offen {ntm}')
                if k < NK - 1: a('s_add_u32 s28, s28, 221184')
        if not MODC: wl()
        CV = [70 + 2*k for k in range(NK)]
        for k in range(NK):
            a(f'buffer_load_ushort v{CV[k]}, v2, s[12:15], s31 offen offset:{64*k}')
        srds()
        stamp()
        a('s_waitcnt vmcnt(0)')
        for k in range(NK):
            a(f'v_lshlrev_b32 v{CV[k]}, 16, v{CV[k]}')
            a(f'v_mul_f32 v{100+k}, {f32(-LOG2E)}, v{CV[k]}')
        for k in range(NK): a(f'v_exp_f32 v{100+k}, v{100+k}')
        for k in range(NK): a(f'v_add_f32 v{100+k}, 1.0, v{100+k}')
        for k in range(NK): a(f'v_rcp_f32 v{100+k}, v{100+k}')
        for k in range(NK): a(f'v_mul_f32 v{CV[k]}, v{CV[k]}, v{100+k}')
        for k in range(NK): rb(a, CV[k], CV[k])
        if MODC:
            wl()
            a('s_waitcnt vmcnt(0)')
        stamp()
        for k in range(NK):
            cp = CV[k]
            for j in range(4): unpack(a, 50 + 2*j, 51 + 2*j, 10 + 4*k + j)
            for j in range(4):
                t = 50 + 2*j
                if k == 0: a(f'v_pk_mul_f32 v[{110+2*j}:{111+2*j}], v[{t}:{t+1}], v[{cp}:{cp+1}] op_sel_hi:[1,0]')
                else: a(f'v_pk_fma_f32 v[{110+2*j}:{111+2*j}], v[{t}:{t+1}], v[{cp}:{cp+1}], v[{110+2*j}:{111+2*j}] op_sel_hi:[1,0,1]')
    a('v_lshlrev_b32 v3, 8, v5')
    a('v_lshl_add_u32 v3, v6, 5, v3')
    a('ds_write_b128 v3, v[110:113]')
    a('ds_write_b128 v3, v[114:117] offset:16')
    a('s_waitcnt lgkmcnt(0)')
    a('s_barrier')
    stamp()
    a('s_mov_b32 s91, s2')
    a('s_cmp_lg_u32 s75, 0')
    a(f's_cbranch_scc1 {"A_wloop" if WMODE == "prod" else "A_done"}')
    a('v_lshlrev_b32 v3, 2, v0')
    tag_fetch(a, 9)
    for k in range(32):
        a(f'ds_read_b32 v{10+k}, v3 offset:{256*k}')
    a('s_lshl_b32 s28, s3, 8')
    a('s_mul_i32 s29, s30, 13824')
    a('s_add_u32 s28, s28, s29')
    a(f's_add_u32 s28, s28, {WS_MODP}')
    a('s_waitcnt lgkmcnt(0)')
    for st in (16, 8, 4, 2):
        for k in range(0, st, 2):
            a(f'v_pk_add_f32 v[{10+k}:{11+k}], v[{10+k}:{11+k}], v[{10+k+st}:{11+k+st}]')
    a('v_add_f32 v10, v10, v11')
    if MSPL:
        a('s_cmp_eq_u32 s40, 1')
        a('s_cbranch_scc1 A_mpart')
        rb(a, 10, 10)
        a('s_sub_u32 s29, s3, 36')
        a('s_cmp_lt_u32 s29, 9')
        a('s_cselect_b32 s29, 1.0, 0')
        a('v_add_f32 v10, s29, v10')
        rb(a, 10, 10)
        a('s_lshl_b32 s28, s3, 8')
        a(f's_add_u32 s28, s28, {WS_MOD}')
        a(f'buffer_store_dword v10, v3, s[4:7], s28 offen {HS}')
        a('s_branch A_done' if ONEK else 's_endpgm')
        a.label('A_mpart')
    a('buffer_store_dword v10, v3, s[4:7], s28 offen sc1')
    a('s_waitcnt vmcnt(0)')
    a('s_mov_b64 exec, 1')
    if TAG: arrive_tag(a, 9)
    else: arrive(a, 1)
    a('s_mov_b64 exec, -1')
    if WMODE == 'prod':
        stamp()
        a('s_branch A_wloop')
        stamp.n = stamp.n0
    else: fin()

    a.label('A_conv')
    a.qbar = None
    KST = 4160
    HB = 4 * KST
    PRM_ = 0
    PT = 4096
    TBL = HB + 1024
    WT = 32768 if WOUT == 'end' else HB + 4608
    assert WT + 18432 <= A_LDS and PT + 4*3072 <= HB
    a(f's_sub_u32 s3, s2, {A_CV0}')
    a('s_load_dwordx8 s[24:31], s[0:1], 8')
    a('s_load_dwordx8 s[32:39], s[0:1], 40')
    if WSEP:
        a('s_and_b32 s94, s3, 7')
        a('s_lshr_b32 s95, s3, 5')
        a('s_bfe_u32 s97, s3, 0x20003')
        a('s_lshl_b32 s3, s95, 5')
        a('s_lshl_b32 s96, s94, 2')
        a('s_add_u32 s3, s3, s96')
        a('s_add_u32 s3, s3, s97')
    else:
        if W2M:
            a(f's_load_dwordx2 s[12:13], s[0:1], {KA["w1"]}')
            a('s_and_b32 s94, s3, 7')
            a('s_lshr_b32 s95, s3, 5')
            a('s_bfe_u32 s97, s3, 0x20003')
            a('s_lshl_b32 s3, s95, 5')
            a('s_lshl_b32 s96, s94, 2')
            a('s_add_u32 s3, s3, s96')
            a('s_add_u32 s3, s3, s97')
            a('s_mul_i32 s98, s95, 294912')
            a('s_mul_i32 s99, s94, 1152')
            a('s_add_u32 s98, s98, s99')
            a('s_mul_i32 s99, s97, 288')
            a('s_add_u32 s98, s98, s99')
            a('s_mul_i32 s99, s94, 663552')
            a('s_mul_i32 s100, s95, 3072')
            a('s_add_u32 s99, s99, s100')
            a('s_mul_i32 s100, s97, 165888')
            a('s_add_u32 s99, s99, s100')
            a(f's_add_u32 s99, s99, {WS_W1F}')
        else:
            a('s_bfe_u32 s101, s3, 0x10003')
            a('s_lshl_b32 s96, s101, 4')
            a(f's_add_u32 s96, s96, {KA["w1"]}')
            a('s_load_dwordx2 s[12:13], s[0:1], s96')
            a('s_and_b32 s94, s3, 7')
            a('s_lshr_b32 s100, s3, 4')
            a('s_lshr_b32 s95, s3, 5')
            a('s_bfe_u32 s97, s3, 0x20003')
            a('s_lshl_b32 s3, s95, 5')
            a('s_lshl_b32 s96, s94, 2')
            a('s_add_u32 s3, s3, s96')
            a('s_add_u32 s3, s3, s97')
            a('s_and_b32 s97, s100, 1')
            a('s_cmp_lg_u32 s101, 0')
            a('s_cbranch_scc1 A_cw2')
            a('s_mul_i32 s98, s95, 294912')
            a('s_mul_i32 s99, s94, 1152')
            a('s_add_u32 s98, s98, s99')
            a('s_mov_b32 s96, 9216')
            a(f's_mov_b32 s99, {WS_W1F}')
            a('s_branch A_cwc')
            a.label('A_cw2')
            a('s_mul_i32 s98, s94, 18')
            a('s_add_u32 s98, s98, s95')
            a('s_mul_i32 s98, s98, 36864')
            a('s_mov_b32 s96, 1152')
            a(f's_mov_b32 s99, {WS_W2F}')
            a.label('A_cwc')
            a('s_mul_i32 s100, s97, 576')
            a('s_add_u32 s98, s98, s100')
            a('s_mul_i32 s100, s94, 663552')
            a('s_add_u32 s99, s99, s100')
            a('s_mul_i32 s100, s95, 3072')
            a('s_add_u32 s99, s99, s100')
            a('s_mul_i32 s100, s97, 331776')
            a('s_add_u32 s99, s99, s100')
    a('v_lshrrev_b32 v9, 4, v7')
    a('v_and_b32 v6, 15, v7')
    a('v_and_b32 v1, 127, v0')
    a('v_lshlrev_b32 v1, 1, v1')
    a('s_lshl_b32 s72, s3, 8')
    a('s_lshl_b32 s73, s3, 1')
    a('v_mov_b32 v2, 0')
    a('s_waitcnt lgkmcnt(0)')
    srd(a, 64, 36, 1152)
    a('buffer_load_ushort v16, v2, s[64:67], s73 offen')
    for j, p in enumerate((24, 26, 28, 30, 32, 34)):
        srd(a, 40 + 4*j, p, 147456)
        a(f'buffer_load_ushort v{10+j}, v1, s[{40+4*j}:{43+4*j}], s72 offen {ntp}')
    srd(a, 64, 38, 1152)
    a('buffer_load_ushort v17, v2, s[64:67], s73 offen')
    srds()
    if os.environ.get('TLBF', '0') == '1':
        a('v_lshlrev_b32 v126, 16, v7')
        a('v_lshl_add_u32 v126, v8, 22, v126')
        a(f'v_min_u32 v126, {WS_W1F - 128}, v126')
        a('v_mov_b32 v127, s99')
        a('v_cmp_lt_u32 vcc, 191, v0')
        a('v_cndmask_b32 v126, v126, v127, vcc')
        a(f'v_add_u32 v126, 0x1ff00, v126')
        a('buffer_load_dword v127, v126, s[4:7], 0 offen sc1')
    stamp()
    a('v_lshrrev_b32 v26, 3, v6')
    a('v_and_b32 v27, 7, v6')
    a('v_lshl_add_u32 v20, v26, 7, v27')
    a('v_bfe_u32 v26, v6, 2, 1')
    a('v_and_b32 v27, 3, v6')
    a('v_lshl_add_u32 v24, v26, 6, v27')
    a('v_add_u32 v24, 128, v24')
    a('v_bfe_u32 v26, v6, 1, 2')
    a('v_and_b32 v27, 1, v6')
    a('v_lshlrev_b32 v27, 1, v27')
    a('v_lshl_add_u32 v28, v26, 6, v27')
    a('v_add_u32 v28, 256, v28')
    a('v_cmp_lt_u32 vcc, 7, v6')
    a('v_cndmask_b32 v24, v24, v28, vcc')
    a('v_lshlrev_b32 v21, 1, v24')
    a('v_add_u32 v25, 8, v6')
    a('v_lshlrev_b32 v22, 7, v25')
    a('v_lshlrev_b32 v23, 3, v6')
    for r in range(20, 26): a(f'v_cvt_f32_u32 v{r}, v{r}')
    GI = 100
    a('v_lshlrev_b32 v26, 3, v0')
    a('v_sub_u32 v26, 2047, v26')
    for j in range(11):
        a(f'v_subrev_u32 v{GI+j}, {j}, v26')
    for j in range(0, 12, 2):
        a(f'v_max_i32 v27, 0, v{GI+j}')
        a('v_cvt_f32_u32 v27, v27')
        if j + 1 < 11:
            a(f'v_max_i32 v28, 0, v{GI+j+1}')
            a('v_cvt_f32_u32 v28, v28')
        a('v_cvt_pk_bf16_f32 v27, v27, v28')
        a('v_lshrrev_b32 v28, 16, v27')
        a('v_and_b32 v27, 0xffff, v27')
        for e, t in ((j, 27), (j + 1, 28)):
            if e >= 11: continue
            a(f'v_subrev_u32 v{t}, 17024, v{t}')
            a(f'v_cmp_lt_i32 vcc, 127, v{GI+e}')
            a(f'v_cndmask_b32 v{t}, v{GI+e}, v{t}, vcc')
            a(f'v_max_i32 v{t}, -1, v{t}')
            a(f'v_lshlrev_b32 v{GI+e}, 1, v{t}')
            a(f'v_add_u32 v{GI+e}, {TBL}, v{GI+e}')
    if LIN:
        a('s_and_b32 s13, s13, 0xffff')
        a(f's_mov_b32 s14, {SZ["w1"]}')
        a('s_mov_b32 s15, 0x20000')
    if not WSEP and not LIN:
        a('s_and_b32 s13, s13, 0xffff')
        a(f's_mov_b32 s14, {SZ["w1"]}')
        a('s_mov_b32 s15, 0x20000')
        a(f's_mov_b32 s95, {(2**32 + 35) // 36}')
        if W2M:
            a(f's_mov_b32 s95, {(2**32 + 17) // 18}')
            for k in range(3):
                a(f's_add_u32 s97, s75, {4*k}')
                a('s_min_u32 s97, s97, 8')
                a('s_lshl_b32 s97, s97, 6')
                a('v_add_u32 v27, s97, v7')
                a('v_mul_hi_u32 v28, v27, s95')
                a('v_mul_u32_u24 v29, 18, v28')
                a('v_sub_u32 v27, v27, v29')
                a('v_mul_u32_u24 v28, 9216, v28')
                a(f'v_lshl_add_u32 v{120+k}, v27, 4, v28')
        for k in range(0 if (W0 or W2M) else 5):
            a(f's_add_u32 s97, s75, {4*k}')
            a('s_min_u32 s97, s97, 17')
            a('s_lshl_b32 s97, s97, 6')
            a('v_add_u32 v27, s97, v7')
            a('v_mul_hi_u32 v28, v27, s95')
            a('v_mul_u32_u24 v29, 36, v28')
            a('v_sub_u32 v27, v27, v29')
            a('v_mul_lo_u32 v28, v28, s96')
            a(f'v_lshl_add_u32 v{120+k}, v27, 4, v28')
    if W0:
        a('s_max_u32 s94, s75, 1')
        a('s_mul_i32 s94, s94, 6')
        a('s_sub_u32 s94, s94, 6')
        for k in range(6):
            a(f's_add_u32 s97, s94, {k}')
            a('s_lshl_b32 s97, s97, 6')
            a('v_add_u32 v27, s97, v7')
            a('v_mul_hi_u32 v28, v27, s95')
            a('v_mul_u32_u24 v29, 36, v28')
            a('v_sub_u32 v27, v27, v29')
            a('v_mul_lo_u32 v28, v28, s96')
            a(f'v_lshl_add_u32 v{120+k}, v27, 4, v28')
    WDMA = 'none' if (WSEP or LIN) else os.environ.get('WDMA', 'param')
    RBACK = os.environ.get('RBACK', '0') == '1'
    def wdma():
        if W0:
            l = a.newlabel('nw')
            a('s_cmp_eq_u32 s75, 0')
            a(f's_cbranch_scc1 {l}')
            a('s_lshl_b32 s97, s94, 10')
            for k in range(6):
                a(f's_add_u32 m0, s97, {WT + 1024*k}')
                a('s_nop 0')
                a(f'buffer_load_dwordx4 v{120+k}, s[12:15], s98 offen {ntw} lds')
            a.label(l)
            return
        for k in range(3 if W2M else 5):
            a(f's_add_u32 s97, s75, {4*k}')
            a(f's_min_u32 s97, s97, {8 if W2M else 17}')
            a('s_lshl_b32 s97, s97, 10')
            a(f's_add_u32 m0, s97, {WT}')
            a('s_nop 0')
            a(f'buffer_load_dwordx4 v{120+k}, s[12:15], s98 offen {ntw} lds')
    if WDMA == 'start': wdma()
    a(f's_waitcnt vmcnt({5 if WDMA == "start" else 0})')
    stamp()
    if WDMA == 'param': wdma()
    for j in range(8): a(f'v_lshlrev_b32 v{10+j}, 16, v{10+j}')
    a('v_readfirstlane_b32 s74, v17')
    a(f'v_mul_f32 v16, {f32(LOG2E)}, v16')
    a('v_exp_f32 v16, v16')
    rb(a, 16, 16)
    a('v_mul_f32 v28, v16, v10')
    a(f'v_mul_f32 v28, {f32(LOG2E)}, v28')
    a('v_mul_f32 v29, v16, v11')
    a(f'v_mul_f32 v29, {f32(1/(2*math.pi))}, v29')
    a('v_rndne_f32 v30, v29')
    a('v_sub_f32 v29, v29, v30')
    a('v_add_f32 v30, v29, v29')
    a('v_rndne_f32 v31, v30')
    a('v_sub_f32 v30, v30, v31')
    a(f'v_mul_f32 v31, {f32(128.0)}, v29')
    a('v_rndne_f32 v32, v31')
    a('v_sub_f32 v31, v31, v32')
    a('v_mul_f32 v12, v16, v12')
    a('v_mul_f32 v13, v16, v13')
    a('v_mul_f32 v32, v14, v12')
    a('v_fma_f32 v32, -v15, v13, v32')
    a('v_mul_f32 v33, v14, v13')
    a('v_fma_f32 v33, v15, v12, v33')
    a('v_lshlrev_b32 v1, 4, v1')
    a(f'ds_write_b128 v1, v[28:31] offset:{PRM_}')
    a(f'ds_write_b64 v1, v[32:33] offset:{PRM_+16}')
    a('v_lshl_add_u32 v3, v8, 5, v9')
    a('v_lshlrev_b32 v3, 5, v3')
    a('s_waitcnt lgkmcnt(0)')
    a('s_barrier')
    stamp()
    PR = 52
    for st in range(8):
        a(f'ds_read_b128 v[{PR+6*st}:{PR+6*st+3}], v3 offset:{PRM_+128*st}')
        a(f'ds_read_b64 v[{PR+6*st+4}:{PR+6*st+5}], v3 offset:{PRM_+128*st+16}')
    XA = [28, 32, 36]; YB = 112
    ACCK = 40
    o = 10
    for st in range(8):
        P = PR + 6*st
        a(f's_waitcnt lgkmcnt({min(15, 14-2*st)})')
        E = [10, 11, 12, 13]; S = [14, 15, 16, 17]; C = [116, 117, 118, 119]
        for t in range(4): a(f'v_mul_f32 v{E[t]}, v{P}, v{20+t}')
        a(f'v_mul_f32 v{S[0]}, v{P+1}, v20')
        a(f'v_mul_f32 v{S[1]}, v{P+2}, v24')
        a(f'v_mul_f32 v{S[2]}, v{P+3}, v25')
        a(f'v_mul_f32 v{S[3]}, v{P+1}, v23')
        for t in (3, 0, 1, 2): a(f'v_exp_f32 v{E[t]}, v{E[t]}')
        for t in (3, 0, 1, 2):
            a(f'v_cos_f32 v{C[t]}, v{S[t]}')
            a(f'v_sin_f32 v{S[t]}, v{S[t]}')
        a(f'v_mul_f32 v18, v{P+4}, v{E[3]}')
        a(f'v_mul_f32 v19, v{P+5}, v{E[3]}')
        a(f'v_mul_f32 v26, v18, v{C[3]}')
        a(f'v_mul_f32 v27, v18, v{S[3]}')
        a(f'v_fma_f32 v26, -v19, v{S[3]}, v26')
        a(f'v_fma_f32 v27, -v19, v{C[3]}, -v27')
        for t in range(3):
            a(f'v_mul_f32 v{C[t]}, v{E[t]}, v{C[t]}')
            a(f'v_mul_f32 v{S[t]}, v{E[t]}, v{S[t]}')
        a(f'v_cvt_pk_bf16_f32 v{YB+(st&3)}, v26, v27')
        for t in range(3):
            a(f'v_cvt_pk_bf16_f32 v{XA[t]+(st&3)}, v{C[t]}, v{S[t]}')
        if st & 3 == 3:
            for t in range(3):
                cin = '0' if st == 3 else f'v[{ACCK+4*t}:{ACCK+4*t+3}]'
                a(f'v_mfma_f32_16x16x32_bf16 v[{ACCK+4*t}:{ACCK+4*t+3}], v[{XA[t]}:{XA[t]+3}], v[{YB}:{YB+3}], {cin}')
    stamp()
    if WDMA == 'kgen': wdma()
    a('v_mul_u32_u24 v24, 3072, v8')
    a(f'v_add_u32 v24, {PT}, v24')
    a('v_lshrrev_b32 v25, 1, v9')
    a('v_and_b32 v26, 1, v9')
    a('v_lshlrev_b32 v27, 9, v25')
    a('v_lshl_add_u32 v27, v6, 5, v27')
    a('v_lshl_add_u32 v27, v26, 4, v27')
    a('v_add_u32 v27, v24, v27')
    a('v_lshlrev_b32 v18, 8, v26')
    a('v_lshl_add_u32 v19, v6, 4, v18')
    a('v_add_u32 v19, 1024, v19')
    a('v_add_u32 v10, 8, v19')
    a('v_lshl_add_u32 v11, v6, 3, v18')
    a('v_add_u32 v11, 1536, v11')
    a('v_add_u32 v12, 128, v11')
    a('v_cmp_lt_u32 vcc, 1, v9')
    a('v_cndmask_b32 v19, v19, v11, vcc')
    a('v_cndmask_b32 v10, v10, v12, vcc')
    a('v_add_u32 v19, v24, v19')
    a('v_add_u32 v10, v24, v10')
    a('v_lshlrev_b32 v11, 8, v9')
    a('v_lshl_add_u32 v11, v6, 2, v11')
    a('v_add_u32 v11, v24, v11')
    a('ds_write_b128 v27, v[40:43]')
    a('ds_write_b64 v19, v[44:45]')
    a('ds_write_b64 v10, v[46:47]')
    for r in range(4):
        a(f'ds_write_b32 v11, v{48+r} offset:{2048+64*r}')
    a('v_mov_b32 v12, 0')
    a('v_mov_b32 v13, 0')
    a('v_lshlrev_b32 v14, 2, v0')
    a(f'ds_write_b32 v14, v12 offset:{HB}')
    a('s_waitcnt lgkmcnt(0)')
    a('s_barrier')
    a('v_min_u32 v24, 191, v0')
    a('v_lshlrev_b32 v25, 4, v24')
    for w in range(4):
        a(f'ds_read_b128 v[{40+4*w}:{43+4*w}], v25 offset:{PT+3072*w}')
    a('s_waitcnt lgkmcnt(0)')
    for r in range(0, 4, 2):
        a(f'v_pk_add_f32 v[{40+r}:{41+r}], v[{40+r}:{41+r}], v[{44+r}:{45+r}]')
        a(f'v_pk_add_f32 v[{48+r}:{49+r}], v[{48+r}:{49+r}], v[{52+r}:{53+r}]')
        a(f'v_pk_add_f32 v[{40+r}:{41+r}], v[{40+r}:{41+r}], v[{48+r}:{49+r}]')
    a('v_cvt_pk_bf16_f32 v40, v40, v41')
    a('v_cvt_pk_bf16_f32 v41, v42, v43')
    a('v_lshlrev_b32 v25, 3, v24')
    a(f'ds_write_b64 v25, v[40:41] offset:{TBL}')
    a('s_waitcnt lgkmcnt(0)')
    a('s_barrier')
    for j in range(11):
        a(f'ds_read_u16 v{60+j}, v{GI+j}')
    a('v_lshlrev_b32 v25, 4, v0')
    a('v_lshlrev_b32 v15, 2, v7')
    a(f'v_mul_u32_u24 v16, {KST}, v8')
    a('v_min_u32 v15, 60, v15')
    a('v_add_u32 v15, v15, v16')
    a('ds_write_b32 v15, v12 offset:4096')
    a('s_waitcnt lgkmcnt(0)')
    for c in range(4):
        for k in range(4):
            a(f'v_lshl_or_b32 v{40+4*c+k}, v{60+c+2*k+1}, 16, v{60+c+2*k}')
        a(f'ds_write_b128 v25, v[{40+4*c}:{43+4*c}] offset:{KST*c}')
    stamp()
    def wout(R, va, vb, sync, part='both'):
        if W2M:
            a(f'v_lshrrev_b32 v{va}, 2, v7')
            a(f'v_mul_u32_u24 v{va}, 288, v{va}')
            a(f'v_and_b32 v{vb}, 3, v7')
            a(f'v_lshl_add_u32 v{va}, v{vb}, 3, v{va}')
            a(f'v_mul_u32_u24 v{vb}, 96, v8')
            a(f'v_add_u32 v{va}, v{va}, v{vb}')
            a(f'v_mul_u32_u24 v{vb}, 55296, v8')
            a(f'v_lshl_add_u32 v{vb}, v7, 4, v{vb}')
            a('s_cmp_ge_u32 s75, 3')
            a('s_cbranch_scc1 A_wdone')
            for k in range(3):
                a(f'ds_read_b64_tr_b16 v[{R+4*k}:{R+1+4*k}], v{va} offset:{WT+32*k}')
                a(f'ds_read_b64_tr_b16 v[{R+2+4*k}:{R+3+4*k}], v{va} offset:{WT+32*k+16*288}')
            for k in range(3):
                a(f's_waitcnt lgkmcnt({4-2*k})')
                a(f'buffer_store_dwordx4 v[{R+4*k}:{R+3+4*k}], v{vb}, s[4:7], s99 offen offset:{1024*k} {WST}')
            a.label('A_wdone')
            return
        if part != 'st':
            a(f'v_lshrrev_b32 v{va}, 2, v7')
            a(f'v_mul_u32_u24 v{va}, 576, v{va}')
            a(f'v_and_b32 v{vb}, 3, v7')
            a(f'v_lshl_add_u32 v{va}, v{vb}, 3, v{va}')
            a(f'v_mul_u32_u24 v{vb}, 96, v8')
            a(f'v_add_u32 v{va}, v{va}, v{vb}')
            a(f'v_mul_u32_u24 v{vb}, 55296, v8')
            a(f'v_lshl_add_u32 v{vb}, v7, 4, v{vb}')
        if sync:
            a('s_waitcnt vmcnt(0) lgkmcnt(0)')
            a('s_barrier')
        def rd(extra, Rr):
            for k in range(3):
                a(f'ds_read_b64_tr_b16 v[{Rr+4*k}:{Rr+1+4*k}], v{va} offset:{WT+32*k+extra}')
                a(f'ds_read_b64_tr_b16 v[{Rr+2+4*k}:{Rr+3+4*k}], v{va} offset:{WT+32*k+extra+16*576}')
        def st(Rr, so, w):
            for k in range(3):
                if w: a(f's_waitcnt lgkmcnt({4-2*k})')
                a(f'buffer_store_dwordx4 v[{Rr+4*k}:{Rr+3+4*k}], v{vb}, s[4:7], {so} offen offset:{1024*k} {WST}')
        if part == 'rd':
            rd(0, R); rd(384, R + 12)
            return
        if part == 'both': rd(0, R)
        st(R, 's99', part == 'both')
        a('s_cmp_ge_u32 s75, 2')
        a('s_cbranch_scc1 A_wdone')
        a(f's_add_u32 s100, s99, {4*55296}')
        if part == 'both': rd(384, R + 12)
        st(R + 12, 's100', part == 'both')
        a.label('A_wdone')
    if WOUT == 'pre': wout(60, 3, 4, True)
    elif WOUT == 'shadow': a('s_waitcnt vmcnt(0) lgkmcnt(0)')
    else: a('s_waitcnt lgkmcnt(0)')
    if WDMA == 'wait': wdma()
    stamp()
    if LIN:
        TOT, COEF = HB + 4608, 51200
        WPOS = os.environ.get('WPOS', 'go')
        CK = 28
        a('s_barrier')
        a('v_sub_u32 v3, 255, v0')
        a('v_lshlrev_b32 v3, 4, v3')
        a('ds_read_b128 v[10:13], v3')
        a('s_waitcnt lgkmcnt(0)')
        for j in range(4):
            unpack(a, CK + 7 - 2*j, CK + 6 - 2*j, 10 + j)
        for e in range(1, 8): a(f'v_add_f32 v{CK+e}, v{CK+e}, v{CK+e-1}')
        a(f'v_mov_b32 v14, v{CK+7}')
        for sh in (1, 2, 4, 8):
            a(f'v_add_f32_dpp v14, v14, v14 row_shr:{sh} row_mask:0xf bank_mask:0xf bound_ctrl:0')
        a('v_add_f32_dpp v14, v14, v14 row_bcast:15 row_mask:0xa bank_mask:0xf')
        a('v_add_f32_dpp v14, v14, v14 row_bcast:31 row_mask:0xc bank_mask:0xf')
        a('v_readlane_b32 s68, v14, 63')
        a(f'v_sub_f32 v14, v14, v{CK+7}')
        a('v_lshlrev_b32 v3, 2, v8')
        a('v_mov_b32 v15, s68')
        a(f'ds_write_b32 v3, v15 offset:{TOT}')
        a('v_mov_b32 v2, 0')
        a('s_waitcnt lgkmcnt(0)')
        wait_flags(a, 75, [(F_GO, 1)], 2, 10)
        stamp()
        a('v_lshlrev_b32 v1, 4, v0')
        a('v_lshrrev_b32 v3, 2, v0')
        a('v_mul_u32_u24 v3, 36864, v3')
        a('v_and_b32 v15, 3, v0')
        a('v_lshl_add_u32 v3, v15, 4, v3')
        a('s_lshl_b32 s26, s3, 6')
        a(f's_add_u32 s26, s26, {WS_XT}')
        a('buffer_load_dwordx4 v[10:13], v3, s[4:7], s26 offen sc1')
        a('v_lshlrev_b32 v3, 5, v0')
        a(f's_mov_b32 s27, {WS_ST}')
        a('buffer_load_dwordx4 v[16:19], v3, s[4:7], s27 offen sc1')
        a('buffer_load_dwordx4 v[20:23], v3, s[4:7], s27 offen offset:16 sc1')
        a(f'ds_read_b128 v[24:27], v2 offset:{TOT}')
        a(f's_mov_b32 s95, {(2**32 + 35) // 36}')
        a('s_max_u32 s94, s75, 1')
        a('s_mul_i32 s94, s94, 6')
        a('s_sub_u32 s94, s94, 6')
        for k in range(6):
            a(f's_add_u32 s97, s94, {k}')
            a('s_lshl_b32 s97, s97, 6')
            a('v_add_u32 v58, s97, v7')
            a('v_mul_hi_u32 v59, v58, s95')
            a('v_mul_u32_u24 v60, 36, v59')
            a('v_sub_u32 v58, v58, v60')
            a('v_mul_lo_u32 v59, v59, s96')
            a(f'v_lshl_add_u32 v{52+k}, v58, 4, v59')
        def wdma6():
            l = a.newlabel('nw')
            a('s_cmp_eq_u32 s75, 0')
            a(f's_cbranch_scc1 {l}')
            a('s_lshl_b32 s97, s94, 10')
            for k in range(6):
                a(f's_add_u32 m0, s97, {WT + 1024*k}')
                a('s_nop 0')
                a(f'buffer_load_dwordx4 v{52+k}, s[12:15], s98 offen {ntw} lds')
            a.label(l)
        if WPOS == 'go': wdma6()
        a('v_sub_u32 v4, 3, v6')
        a('v_and_b32 v4, 3, v4')
        a('v_lshlrev_b32 v5, 3, v9')
        a('v_sub_u32 v5, v5, v6')
        a('v_add_u32 v5, 15, v5')
        a('v_sub_u32 v5, v5, v4')
        a('v_lshlrev_b32 v5, 1, v5')
        a(f'v_mul_u32_u24 v4, {KST}, v4')
        a('v_add_u32 v4, v4, v5')
        a('v_sub_u32 v5, 3, v8')
        a('v_lshlrev_b32 v5, 7, v5')
        a('v_add_u32 v4, v4, v5')
        a('v_lshlrev_b32 v15, 5, v6')
        a('v_lshl_add_u32 v15, v9, 4, v15')
        a('v_add_u32 v5, v5, v15')
        a(f'v_add_u32 v5, {HB+32}, v5')
        a('s_waitcnt lgkmcnt(0)')
        for w in range(3):
            a(f's_cmp_gt_u32 s75, {w}')
            a('s_cselect_b32 s68, 1.0, 0')
            a(f'v_fmac_f32 v14, s68, v{24+w}')
        for j in range(4):
            a(f'v_pk_add_f32 v[{CK+2*j}:{CK+2*j+1}], v[{CK+2*j}:{CK+2*j+1}], v[14:15] op_sel_hi:[1,0]')
        ACC, BF = 36, 68
        AREG = [100, 104, 108, 112, 116, 120, 124, 16]
        def aread(e, i):
            r = AREG[i]; off = 64 * (57 - e - 8*i)
            return [f'ds_read_b64 v[{r}:{r+1}], v4 offset:{off}', f'ds_read_b64 v[{r+2}:{r+3}], v4 offset:{off+8}']
        def bread(e, j):
            return [f'ds_read_b128 v[{BF+4*j}:{BF+4*j+3}], v5 offset:{512*j+64*(1-e)}']
        for i in range(7):
            for l in aread(0, i): a(l)
        if WPOS == 'go':
            lw, lx = a.newlabel('w0'), a.newlabel('wx')
            a('s_cmp_eq_u32 s75, 0')
            a(f's_cbranch_scc1 {lw}')
            a('s_waitcnt vmcnt(6)')
            a(f's_branch {lx}')
            a.label(lw)
            a('s_waitcnt vmcnt(0)')
            a.label(lx)
        else:
            a('s_waitcnt vmcnt(0)')
            wdma6()
        stamp()
        for j in range(4): unpack(a, ACC + 2*j, ACC + 2*j + 1, 10 + j)
        for e in range(8): a(f'v_lshlrev_b32 v{44+e}, 16, v{16+e}')
        for e in range(8): a(f'v_and_b32 v{16+e}, 0xffff0000, v{16+e}')
        for e in range(8): a(f'v_rcp_f32 v{44+e}, v{44+e}')
        for j in range(4):
            t = ACC + 2*j
            a(f'v_pk_add_f32 v[{t}:{t+1}], v[{t}:{t+1}], v[{16+2*j}:{17+2*j}] neg_lo:[0,1] neg_hi:[0,1]')
        for j in range(4):
            t = ACC + 2*j
            a(f'v_pk_mul_f32 v[{t}:{t+1}], v[{t}:{t+1}], v[{44+2*j}:{45+2*j}]')
        for j in range(4):
            t = ACC + 2*j
            a(f'v_cvt_pk_bf16_f32 v{24+j}, v{t}, v{t+1}')
        a(f'ds_write_b128 v1, v[24:27] offset:{HB+512}')
        for l in aread(0, 7): a(l)
        l0 = a.newlabel('n0')
        a('s_cmp_lg_u32 s75, 0')
        a(f's_cbranch_scc1 {l0}')
        a(f'buffer_load_dword v20, v2, s[16:19], 0 offen offset:{F_GO+64} sc1')
        a.label(l0)
        a('s_waitcnt lgkmcnt(0)')
        a('s_barrier')
        for j in range(7, -1, -1):
            for l in bread(0, j): a(l)
        stamp()
        for e in range(2):
            for i in range(8):
                order = list(range(7, i - 1, -1))
                for n, al in enumerate(order):
                    j = al - i
                    if i == 0:
                        if e == 0: a(f's_waitcnt lgkmcnt({7-n})')
                        else: a(f's_waitcnt lgkmcnt({min(15, 3*j)})')
                    c = f'v[{ACC+4*al}:{ACC+4*al+3}]'
                    cin = '0' if (e == 0 and i == 0) else c
                    A = AREG[i]; B = BF + 4*j
                    a(f'v_mfma_f32_16x16x32_bf16 {c}, v[{A}:{A+3}], v[{B}:{B+3}], {cin}')
                if e == 0:
                    for l in aread(1, i) + bread(1, 7 - i): a(l)
                if e == 1 and i == 1:
                    lsk, lpp, lok = a.newlabel('m_skip'), a.newlabel('m_poll'), a.newlabel('m_ok')
                    a('s_cmp_lg_u32 s75, 0')
                    a(f's_cbranch_scc1 {lsk}')
                    a(f's_mov_b32 s70, {SPIN_MAX}')
                    a.label(lpp)
                    a('s_waitcnt vmcnt(0)')
                    a('v_readfirstlane_b32 s71, v20')
                    a('s_cmp_lg_u32 s71, 0')
                    a(f's_cbranch_scc1 {lok}')
                    a('s_sub_u32 s70, s70, 1')
                    a('s_cmp_eq_u32 s70, 0')
                    a(f's_cbranch_scc1 {lok}')
                    a('s_sleep 2')
                    a(f'buffer_load_dword v20, v2, s[16:19], 0 offen offset:{F_GO+64} sc1')
                    a(f's_branch {lpp}')
                    a.label(lok)
                    a('v_lshrrev_b32 v21, 1, v7')
                    a('v_min_u32 v21, 5, v21')
                    a('v_and_b32 v22, 1, v7')
                    a('v_mul_u32_u24 v22, 13824, v22')
                    a('v_mul_u32_u24 v23, 2304, v21')
                    a('v_add_u32 v22, v22, v23')
                    a('s_lshl_b32 s29, s3, 2')
                    a(f's_add_u32 s30, s29, {WS_MODP}')
                    a('buffer_load_dword v20, v22, s[4:7], s30 offen sc1')
                    a.label(lsk)
        stamp()
        a('s_barrier')
        a('v_lshl_add_u32 v4, v6, 2, v9')
        a('v_bfe_u32 v5, v4, 3, 2')
        a('v_xor_b32 v4, v4, v5')
        a('v_lshlrev_b32 v4, 4, v4')
        a('v_lshl_add_u32 v4, v8, 13, v4')
        for al in range(8):
            a(f'ds_write_b128 v4, v[{ACC+4*al}:{ACC+4*al+3}] offset:{1024*al}')
        lsk = a.newlabel('m_fin')
        a('s_cmp_lg_u32 s75, 0')
        a(f's_cbranch_scc1 {lsk}')
        a('s_waitcnt vmcnt(0)')
        a('v_add_f32_dpp v20, v20, v20 quad_perm:[1,0,3,2] row_mask:0xf bank_mask:0xf')
        rb(a, 20, 20)
        a('v_add_f32 v22, 1.0, v20')
        rb(a, 22, 22)
        a('v_cmp_eq_u32 vcc, 1, v21')
        a('v_cmp_eq_u32 s[68:69], 4, v21')
        a('s_or_b64 vcc, vcc, s[68:69]')
        a('v_cndmask_b32 v20, v20, v22, vcc')
        a(f's_add_u32 s30, s29, {WS_MOD}')
        a('v_lshlrev_b32 v22, 2, v21')
        a('buffer_store_dword v20, v23, s[4:7], s30 offen')
        a(f'ds_write_b32 v22, v20 offset:{COEF}')
        a.label(lsk)
        a('v_lshlrev_b32 v4, 1, v0')
        a('v_bfe_u32 v5, v4, 3, 2')
        a('v_xor_b32 v16, v4, v5')
        a('v_lshlrev_b32 v16, 4, v16')
        a('v_xor_b32 v17, 16, v16')
        a('s_waitcnt lgkmcnt(0)')
        a('s_barrier')
        a(f'ds_read_b128 v[52:55], v2 offset:{COEF}')
        for w in range(4):
            a(f'ds_read_b128 v[{68+8*w}:{71+8*w}], v16 offset:{8192*w}')
            a(f'ds_read_b128 v[{72+8*w}:{75+8*w}], v17 offset:{8192*w}')
        if ONEK:
            a('s_lshl_b32 s26, s3, 7')
            a(f's_add_u32 s26, s26, {WS_X2T}')
            a('v_lshrrev_b32 v3, 3, v0')
            a('v_mul_u32_u24 v3, 73728, v3')
            a('v_and_b32 v4, 7, v0')
            a('v_lshl_add_u32 v3, v4, 4, v3')
        else:
            a('s_lshl_b32 s26, s3, 5')
            a(f's_add_u32 s26, s26, {WS_X2T}')
            a('v_lshrrev_b32 v3, 1, v0')
            a('v_mul_u32_u24 v3, 18432, v3')
            a('v_and_b32 v4, 1, v0')
            a('v_lshl_add_u32 v3, v4, 4, v3')
        for j in range(4):
            unpack(a, 36 + 2*j, 37 + 2*j, 24 + j)
            unpack(a, 44 + 2*j, 45 + 2*j, 10 + j)
        a('s_waitcnt lgkmcnt(8)')
        a('v_mul_f32 v56, v54, v53')
        a('v_mul_f32 v58, v54, v52')
        a('v_mul_f32 v60, s74, v56')
        a('v_mul_f32 v62, s74, v58')
        for j in range(4): a(f'v_pk_add_f32 v[{44+2*j}:{45+2*j}], v[{44+2*j}:{45+2*j}], v[62:63] op_sel_hi:[1,0]')
        for j in range(4): a(f'v_pk_fma_f32 v[{44+2*j}:{45+2*j}], v[{36+2*j}:{37+2*j}], v[60:61], v[{44+2*j}:{45+2*j}] op_sel_hi:[1,0,1]')
        for j in range(4): a(f'v_pk_fma_f32 v[{44+2*j}:{45+2*j}], v[{CK+2*j}:{CK+2*j+1}], v[58:59], v[{44+2*j}:{45+2*j}] op_sel_hi:[1,0,1]')
        a('s_waitcnt lgkmcnt(0)')
        Y = [68 + 2*j for j in range(4)]
        for y in Y: a(f'v_pk_add_f32 v[{y}:{y+1}], v[{y}:{y+1}], v[{y+8}:{y+9}]')
        for y in Y: a(f'v_pk_add_f32 v[{y+16}:{y+17}], v[{y+16}:{y+17}], v[{y+24}:{y+25}]')
        for y in Y: a(f'v_pk_add_f32 v[{y}:{y+1}], v[{y}:{y+1}], v[{y+16}:{y+17}]')
        for j, y in enumerate(Y): a(f'v_pk_fma_f32 v[{y}:{y+1}], v[{y}:{y+1}], v[56:57], v[{44+2*j}:{45+2*j}] op_sel_hi:[1,0,1]')
        for j, y in enumerate(Y): a(f'v_cvt_pk_bf16_f32 v{20+j}, v{y}, v{y+1}')
        a('buffer_store_dwordx4 v[20:23], v3, s[4:7], s26 offen')
        stamp()
        a('s_waitcnt vmcnt(1)')
        a('s_barrier')
        wout(100, 4, 5, False)
        fin()
    else:
        if W0:
            SA, COEF = HB + 4608, 51200
            diag(a, 4, 2, 400, 75)
            a('s_barrier')
            a('v_mov_b32 v2, 0')
            a('v_lshlrev_b32 v1, 4, v0')
            lsk = a.newlabel('w0s')
            a('s_cmp_lg_u32 s75, 0')
            a(f's_cbranch_scc1 {lsk}')
            a('v_lshrrev_b32 v3, 2, v7')
            a('v_mul_u32_u24 v3, 36864, v3')
            a('v_and_b32 v35, 3, v7')
            a('v_lshl_add_u32 v3, v35, 4, v3')
            a('v_lshrrev_b32 v15, 1, v7')
            a(f'v_min_u32 v15, {2 if MSPL else 5}, v15')
            a('v_and_b32 v14, 1, v7')
            a('v_mul_u32_u24 v14, 13824, v14')
            a('v_mul_u32_u24 v34, 2304, v15')
            a('v_add_u32 v14, v14, v34')
            a('s_lshl_b32 s29, s3, 2')
            a(f's_add_u32 s30, s29, {WS_MODP}')
            a('s_lshl_b32 s26, s3, 6')
            a(f's_add_u32 s26, s26, {WS_XT}')
            lp, ld = a.newlabel('poll'), a.newlabel('go')
            a(f's_mov_b32 s70, {SPIN_MAX}')
            a.label(lp)
            a(f'buffer_load_dword v10, v2, s[16:19], 0 offen offset:{F_GO} sc1')
            a('s_waitcnt vmcnt(0)')
            a('v_readfirstlane_b32 s71, v10')
            a('s_cmp_lg_u32 s71, 0')
            a(f's_cbranch_scc1 {ld}')
            a('s_sub_u32 s70, s70, 1')
            a('s_cmp_eq_u32 s70, 0')
            a(f's_cbranch_scc1 {ld}')
            a(f's_sleep {os.environ.get("SLP", "4")}')
            a(f's_branch {lp}')
            a.label(ld)
            diag(a, 5, 2, 400, 75)
            a('buffer_load_dword v32, v14, s[4:7], s30 offen sc1')
            for i in range(4):
                a(f's_mov_b32 m0, {HB + 512 + 1024*i}')
                a('s_nop 0')
                a('buffer_load_dwordx4 v3, s[4:7], s26 offen sc1 lds')
                if i < 3: a(f's_add_u32 s26, s26, {16*36864}')
            a(f's_mov_b32 s27, {WS_ST}')
            for i in range(2):
                a(f's_mov_b32 m0, {SA + 4096*i}')
                a('s_nop 0')
                for q in range(4):
                    a(f'buffer_load_dwordx4 v1, s[4:7], s27 offen offset:{1024*q} sc1 lds')
                if i == 0: a('s_add_u32 s27, s27, 4096')
            a('s_waitcnt vmcnt(12)')
            a('v_add_f32_dpp v32, v32, v32 quad_perm:[1,0,3,2] row_mask:0xf bank_mask:0xf')
            rb(a, 32, 32)
            a('v_add_f32 v33, 1.0, v32')
            rb(a, 33, 33)
            a('v_cmp_eq_u32 vcc, 1, v15')
            a('v_cmp_eq_u32 s[68:69], 4, v15')
            a('s_or_b64 vcc, vcc, s[68:69]')
            a('v_cndmask_b32 v32, v32, v33, vcc')
            a('v_lshlrev_b32 v33, 2, v15')
            if not MSPL:
                a(f's_add_u32 s30, s29, {WS_MOD}')
                a('buffer_store_dword v32, v34, s[4:7], s30 offen')
            a(f'ds_write_b32 v33, v32 offset:{COEF}')
            a.label(lsk)
        else:
            diag(a, 4, 2, 400, 75)
            a('v_mov_b32 v2, 0')
            if TAG and not COLL: wait_tags(a, 75)
            else: wait_flags(a, 75, [(F_GO, 1)], 2, 10)
            diag(a, 5, 2, 400, 75)
            stamp()
            a('v_lshlrev_b32 v1, 4, v0')
            a('v_lshrrev_b32 v3, 2, v0')
            a('v_mul_u32_u24 v3, 36864, v3')
            a('v_and_b32 v35, 3, v0')
            a('v_lshl_add_u32 v3, v35, 4, v3')
            a('s_lshl_b32 s26, s3, 6')
            a(f's_add_u32 s26, s26, {WS_XT}')
            a('buffer_load_dwordx4 v[10:13], v3, s[4:7], s26 offen sc1')
            a('v_lshlrev_b32 v3, 5, v0')
            a(f's_mov_b32 s27, {WS_ST}')
            a('buffer_load_dwordx4 v[16:19], v3, s[4:7], s27 offen sc1')
            a('buffer_load_dwordx4 v[20:23], v3, s[4:7], s27 offen offset:16 sc1')
            a('v_lshrrev_b32 v15, 1, v7')
            a(f'v_min_u32 v15, {2 if MSPL else 5}, v15')
            a('v_and_b32 v14, 1, v7')
            a('v_mul_u32_u24 v14, 13824, v14')
            a('v_mul_u32_u24 v34, 2304, v15')
            a('v_add_u32 v14, v14, v34')
            a('s_lshl_b32 s29, s3, 2')
            a(f's_add_u32 s30, s29, {WS_MODP}')
            a('buffer_load_dword v32, v14, s[4:7], s30 offen sc1')
            if WDMA == 'go': wdma()
            if WOUT == 'shadow': wout(68, 4, 5, False)
        a('v_sub_u32 v4, 3, v6')
        a('v_and_b32 v4, 3, v4')
        a('v_lshlrev_b32 v5, 3, v9')
        a('v_sub_u32 v5, v5, v6')
        a('v_add_u32 v5, 15, v5')
        a('v_sub_u32 v5, v5, v4')
        a('v_lshlrev_b32 v5, 1, v5')
        a(f'v_mul_u32_u24 v4, {KST}, v4')
        a('v_add_u32 v4, v4, v5')
        a('v_sub_u32 v5, 3, v8')
        a('v_lshlrev_b32 v5, 7, v5')
        a('v_add_u32 v4, v4, v5')
        a('v_lshlrev_b32 v33, 5, v6')
        a('v_lshl_add_u32 v33, v9, 4, v33')
        a('v_add_u32 v5, v5, v33')
        a(f'v_add_u32 v5, {HB+32}, v5')
        ACC, BF, AF = 36, 68, 100 - 4
        AF = 100 - 0
        ACC, BF, AF = 34, 66, 98
        ACC, BF, AF = 32 + 4, 68, 100
        AREG = [100, 104, 108, 112, 116, 120, 124, 16]
        def aread(e, i, late=False):
            r = AREG[i]; off = 64 * (57 - e - 8*i)
            return [f'ds_read_b64 v[{r}:{r+1}], v4 offset:{off}', f'ds_read_b64 v[{r+2}:{r+3}], v4 offset:{off+8}']
        def bread(e, j):
            return [f'ds_read_b128 v[{BF+4*j}:{BF+4*j+3}], v5 offset:{512*j+64*(1-e)}']
        for i in range(7):
            for l in aread(0, i): a(l)
        if W0:
            lsk = a.newlabel('w0w')
            a('s_cmp_lg_u32 s75, 0')
            a(f's_cbranch_scc1 {lsk}')
            a('s_waitcnt vmcnt(0)')
            a.label(lsk)
            a('s_waitcnt lgkmcnt(0)')
            a('s_barrier')
            stamp()
            a('v_lshlrev_b32 v3, 5, v0')
            a(f'ds_read_b128 v[32:35], v2 offset:{COEF}')
            a(f'ds_read_b128 v[10:13], v1 offset:{HB+512}')
            a(f'ds_read_b128 v[16:19], v3 offset:{SA}')
            a(f'ds_read_b128 v[20:23], v3 offset:{SA+16}')
            a('s_waitcnt lgkmcnt(3)')
            a('v_readfirstlane_b32 s73, v34')
            a('v_mov_b32 v34, v32')
            a('v_mov_b32 v14, v33')
            a('s_waitcnt lgkmcnt(0)')
            stamp()
        else:
            a(f's_waitcnt vmcnt({5 if WDMA == "go" else (3 if WOUT == "shadow" else 0)})')
            stamp()
            a('v_add_f32_dpp v32, v32, v32 quad_perm:[1,0,3,2] row_mask:0xf bank_mask:0xf')
            rb(a, 32, 32)
            a('v_add_f32 v33, 1.0, v32')
            rb(a, 33, 33)
            a('v_cmp_eq_u32 vcc, 1, v15')
            a('v_cmp_eq_u32 s[68:69], 4, v15')
            a('s_or_b64 vcc, vcc, s[68:69]')
            a('v_cndmask_b32 v32, v32, v33, vcc')
            a(f's_add_u32 s30, s29, {WS_MOD}')
            a('v_readlane_b32 s68, v32, 0')
            a('v_readlane_b32 s69, v32, 2')
            a('v_readlane_b32 s73, v32, 4')
            if not MSPL: a('buffer_store_dword v32, v34, s[4:7], s30 offen')
            a('v_mov_b32 v34, s68')
            a('v_mov_b32 v14, s69')
        for j in range(4): unpack(a, ACC + 2*j, ACC + 2*j + 1, 10 + j)
        for e in range(8): a(f'v_lshlrev_b32 v{24+e}, 16, v{16+e}')
        for e in range(8): a(f'v_and_b32 v{16+e}, 0xffff0000, v{16+e}')
        for e in range(8): a(f'v_rcp_f32 v{24+e}, v{24+e}')
        for j in range(4):
            t = ACC + 2*j
            a(f'v_pk_add_f32 v[{t}:{t+1}], v[{t}:{t+1}], v[{16+2*j}:{17+2*j}] neg_lo:[0,1] neg_hi:[0,1]')
        for j in range(4):
            t = ACC + 2*j
            a(f'v_pk_mul_f32 v[{t}:{t+1}], v[{t}:{t+1}], v[{24+2*j}:{25+2*j}]')
        for j in range(4):
            t = ACC + 2*j
            a(f'v_pk_fma_f32 v[{t}:{t+1}], v[{t}:{t+1}], v[14:15], v[34:35] op_sel_hi:[1,0,0]')
        for j in range(4):
            t = ACC + 2*j
            a(f'v_cvt_pk_bf16_f32 v{24+j}, v{t}, v{t+1}')
        a(f'ds_write_b128 v1, v[24:27] offset:{HB+512}')
        for l in aread(0, 7): a(l)
        a('s_waitcnt lgkmcnt(0)')
        a('s_barrier')
        for j in range(7, -1, -1):
            for l in bread(0, j): a(l)
        stamp()
        for e in range(2):
            for i in range(8):
                order = list(range(7, i - 1, -1))
                for n, al in enumerate(order):
                    j = al - i
                    if i == 0:
                        if e == 0: a(f's_waitcnt lgkmcnt({7-n})')
                        else:
                            a(f's_waitcnt lgkmcnt({min(15, 3*j)})')
                    c = f'v[{ACC+4*al}:{ACC+4*al+3}]'
                    cin = '0' if (e == 0 and i == 0) else c
                    A = AREG[i]; B = BF + 4*j
                    a(f'v_mfma_f32_16x16x32_bf16 {c}, v[{A}:{A+3}], v[{B}:{B+3}], {cin}')
                if e == 0:
                    for l in aread(1, i) + bread(1, 7 - i): a(l)
        if WOUT == 'post': wout(100, 4, 5, False)
        if WOUT == 'split':
            wout(100, 4, 2, False, 'rd')
            a('s_waitcnt lgkmcnt(0)')
        stamp()
        a('s_barrier')
        a('v_lshl_add_u32 v4, v6, 2, v9')
        a('v_bfe_u32 v5, v4, 3, 2')
        a('v_xor_b32 v4, v4, v5')
        a('v_lshlrev_b32 v4, 4, v4')
        a('v_lshl_add_u32 v4, v8, 13, v4')
        for al in range(8):
            a(f'ds_write_b128 v4, v[{ACC+4*al}:{ACC+4*al+3}] offset:{1024*al}')
        a('v_lshlrev_b32 v4, 1, v0')
        a('v_bfe_u32 v5, v4, 3, 2')
        a('v_xor_b32 v16, v4, v5')
        a('v_lshlrev_b32 v16, 4, v16')
        a('v_xor_b32 v17, 16, v16')
        a('s_waitcnt lgkmcnt(0)')
        a('s_barrier')
        for w in range(4):
            a(f'ds_read_b128 v[{68+8*w}:{71+8*w}], v16 offset:{8192*w}')
            a(f'ds_read_b128 v[{72+8*w}:{75+8*w}], v17 offset:{8192*w}')
        if ONEK:
            a('s_lshl_b32 s26, s3, 7')
            a(f's_add_u32 s26, s26, {WS_X2T}')
            a('v_lshrrev_b32 v3, 3, v0')
            a('v_mul_u32_u24 v3, 73728, v3')
            a('v_and_b32 v4, 7, v0')
            a('v_lshl_add_u32 v3, v4, 4, v3')
        else:
            a('s_lshl_b32 s26, s3, 5')
            a(f's_add_u32 s26, s26, {WS_X2T}')
            a('v_lshrrev_b32 v3, 1, v0')
            a('v_mul_u32_u24 v3, 18432, v3')
            a('v_and_b32 v4, 1, v0')
            a('v_lshl_add_u32 v3, v4, 4, v3')
        a('v_mov_b32 v18, s74')
        a('v_mov_b32 v20, s73')
        for j in range(4):
            unpack(a, 36 + 2*j, 37 + 2*j, 24 + j)
            unpack(a, 44 + 2*j, 45 + 2*j, 10 + j)
        a('s_waitcnt lgkmcnt(0)')
        Y = [68 + 2*j for j in range(4)]
        for y in Y: a(f'v_pk_add_f32 v[{y}:{y+1}], v[{y}:{y+1}], v[{y+8}:{y+9}]')
        for y in Y: a(f'v_pk_add_f32 v[{y+16}:{y+17}], v[{y+16}:{y+17}], v[{y+24}:{y+25}]')
        for y in Y: a(f'v_pk_add_f32 v[{y}:{y+1}], v[{y}:{y+1}], v[{y+16}:{y+17}]')
        for j, y in enumerate(Y): a(f'v_pk_fma_f32 v[{y}:{y+1}], v[{36+2*j}:{37+2*j}], v[18:19], v[{y}:{y+1}] op_sel_hi:[1,0,1]')
        for j, y in enumerate(Y): a(f'v_pk_fma_f32 v[{y}:{y+1}], v[{y}:{y+1}], v[20:21], v[{44+2*j}:{45+2*j}] op_sel_hi:[1,0,1]')
        for j, y in enumerate(Y): a(f'v_cvt_pk_bf16_f32 v{28+j}, v{y}, v{y+1}')
        a(f'buffer_store_dwordx4 v[28:31], v3, s[4:7], s26 offen {os.environ.get("X2ST", HS)}')
        diag(a, 6, 2, 400, 75)
        diag(a, 7, 2, A_WP0 - 1, 75)
        if WOUT == 'split': wout(100, 4, 2, False, 'st')
        if WOUT == 'end':
            stamp()
            a('s_waitcnt vmcnt(1)')
            a('s_barrier')
            wout(100, 4, 5, False)
        fin()

    if WSEP:
        a.label('A_wprep')
        a(f's_sub_u32 s91, s2, {A_WP0}')
        a.label('A_wloop')
        if WMODE == 'prod': stamp.n = 6
        a('s_mov_b32 s3, s91')
        a('s_and_b32 s26, s3, 7')
        a('s_lshr_b32 s27, s3, 3')
        a('s_cmp_ge_u32 s27, 18')
        a('s_cbranch_scc1 A_wp2')
        a(f's_load_dwordx2 s[32:33], s[0:1], {KA["w1"]}')
        a('s_mul_i32 s24, s27, 294912')
        a('s_mul_i32 s25, s26, 1152')
        a('s_add_u32 s24, s24, s25')
        a('s_mov_b32 s31, 9216')
        a(f's_mov_b32 s28, {WS_W1F}')
        a('s_branch A_wpc')
        a.label('A_wp2')
        a(f's_load_dwordx2 s[32:33], s[0:1], {KA["w2"]}')
        a('s_sub_u32 s27, s27, 18')
        a('s_mul_i32 s24, s26, 18')
        a('s_add_u32 s24, s24, s27')
        a('s_mul_i32 s24, s24, 36864')
        a('s_mov_b32 s31, 1152')
        a(f's_mov_b32 s28, {WS_W2F}')
        a.label('A_wpc')
        a('s_mul_i32 s29, s26, 663552')
        a('s_add_u32 s28, s28, s29')
        a('s_mul_i32 s29, s27, 3072')
        a('s_add_u32 s28, s28, s29')
        a('s_lshl_b32 s29, s31, 3')
        a('s_mul_i32 s29, s29, s75')
        a('s_add_u32 s24, s24, s29')
        a(f's_mov_b32 s30, {(2**32 + 71) // 72}')
        for k in range(9):
            a(f'v_add_u32 v2, {64*k}, v7')
            a('v_mul_hi_u32 v3, v2, s30')
            a('v_mul_u32_u24 v4, 72, v3')
            a('v_sub_u32 v2, v2, v4')
            a('v_mul_lo_u32 v3, v3, s31')
            a(f'v_lshl_add_u32 v{50+k}, v2, 4, v3')
        a('v_lshrrev_b32 v3, 2, v7')
        a('v_mul_u32_u24 v3, 1152, v3')
        a('v_and_b32 v4, 3, v7')
        a('v_lshl_add_u32 v3, v4, 3, v3')
        a('v_mul_u32_u24 v4, 288, v8')
        a('v_add_u32 v3, v3, v4')
        a('v_mul_u32_u24 v4, 165888, v8')
        a('v_lshl_add_u32 v4, v7, 4, v4')
        a('s_mul_i32 s29, s75, 9216')
        a('v_mov_b32 v2, 0')
        a('s_waitcnt lgkmcnt(0)')
        srds(); srd(a, 8, 32, SZ['w1'])
        if WMODE == 'sep' and WTHR > 0: wait_flags(a, 75, [(F_GO + 64, 1)], 2, 10)
        if WMODE == 'prod': a('s_barrier')
        stamp()
        for k in range(9):
            if k >= WCH: a(f's_waitcnt vmcnt({WCH-1})')
            a(f's_add_u32 m0, s29, {1024*k}')
            a('s_nop 0')
            a(f'buffer_load_dwordx4 v{50+k}, s[8:11], s24 offen lds')
        a('s_waitcnt vmcnt(0)')
        a('s_barrier')
        stamp()
        for k in range(9):
            a(f'ds_read_b64_tr_b16 v[{10+4*k}:{11+4*k}], v3 offset:{32*k}')
            a(f'ds_read_b64_tr_b16 v[{12+4*k}:{13+4*k}], v3 offset:{32*k+16*1152}')
        for k in range(9):
            a(f's_waitcnt lgkmcnt({min(15, 16-2*k)})')
            a(f'buffer_store_dwordx4 v[{10+4*k}:{13+4*k}], v4, s[4:7], s28 offen offset:{1024*(k%3)} {WST}')
            if k % 3 == 2 and k < 8: a('s_add_u32 s28, s28, 55296')
        if WMODE == 'prod':
            a(f's_add_u32 s91, s91, {NPROD}')
            a('s_cmp_lt_u32 s91, 288')
            a('s_cbranch_scc1 A_wloop')
        fin()
    if COLL:
        a.label('A_coll')
        a(f's_cmp_lg_u32 s3, {54 if MSPL else 108}')
        a('s_cbranch_scc1 A_done')
        a('s_cmp_lg_u32 s75, 0')
        a('s_cbranch_scc1 A_done')
        a('s_waitcnt lgkmcnt(0)')
        srds()
        if not LIN:
            os.environ['SLP'], keep = '0', os.environ.get('SLP')
            wait_tags(a, 75, not ONEK)
            if keep is None: del os.environ['SLP']
            else: os.environ['SLP'] = keep
            a('v_mov_b32 v3, 1')
            a('v_mov_b32 v2, 0')
            a('s_mov_b64 exec, 1')
            a(f'buffer_store_dword v3, v2, s[16:19], 0 offen offset:{F_GO} sc1')
            diag(a, 3, 2, A_MOD0 + (54 if MSPL else 108), 75)
        else:
            a(f's_mov_b32 s70, {SPIN_MAX}')
            a('v_mov_b32 v2, 0')
            a('v_mov_b32 v3, 1')
            a('v_min_u32 v11, 42, v7')
            a('v_lshlrev_b32 v11, 4, v11')
            a(f's_mov_b32 s71, {WS_FL1}')
            a('s_mov_b32 s40, 0')
            a.label('A_cp')
            a('buffer_load_dword v10, v2, s[16:19], 0 offen sc1')
            a('buffer_load_dwordx4 v[12:15], v11, s[4:7], s71 offen sc1')
            a('s_waitcnt vmcnt(0)')
            for r in range(12, 16): a(f'v_xor_b32 v{r}, v{r}, v10')
            a('v_or3_b32 v12, v12, v13, v14')
            a('v_or_b32 v12, v12, v15')
            a('v_cmp_eq_u32 vcc, 0, v10')
            a('v_cndmask_b32 v12, v12, 1, vcc')
            a('v_cmp_ne_u32 vcc, 0, v12')
            a('s_sub_u32 s70, s70, 1')
            a('s_cmp_eq_u32 s70, 0')
            a('s_cselect_b64 vcc, 0, vcc')
            a('s_and_b32 s41, vcc_lo, 0xffff')
            a('s_and_b32 s42, vcc_lo, 0xffff0000')
            a('s_or_b32 s42, s42, vcc_hi')
            for bit, reg in ((0, 41), (1, 42)):
                l = a.newlabel('cs')
                a(f's_bitcmp1_b32 s40, {bit}')
                a(f's_cbranch_scc1 {l}')
                a(f's_cmp_lg_u32 s{reg}, 0')
                a(f's_cbranch_scc1 {l}')
                a('s_mov_b64 exec, 1')
                a(f'buffer_store_dword v3, v2, s[16:19], 0 offen offset:{F_GO + 64*bit} sc1')
                a('s_mov_b64 exec, -1')
                a(f's_or_b32 s40, s40, {1 << bit}')
                a.label(l)
            a('s_cmp_lg_u32 s40, 3')
            a('s_cbranch_scc1 A_cp')
        if not ONEK: a('s_endpgm')
    a.label('A_done')
    if not ONEK:
        a('s_endpgm')
        return name, a.maxv + 1, a.maxs + 1
    a.quad = None
    a('s_mov_b64 exec, -1')
    a('v_readfirstlane_b32 s2, v129')
    a('v_mov_b32 v0, v131')
    a('v_readfirstlane_b32 s3, v131')
    a('s_waitcnt lgkmcnt(0)')
    srds()
    a('v_mov_b32 v1, 0')
    a('buffer_load_dword v9, v1, s[16:19], 0 offen sc1')
    a('s_waitcnt vmcnt(0)')
    a('s_barrier')
    a('s_cmp_lg_u32 s3, 0')
    a('s_cbranch_scc1 J_go')
    a(f's_mov_b32 s70, {SPIN_MAX}')
    a.label('J_tag')
    a('v_readfirstlane_b32 s71, v9')
    a('s_sub_u32 s70, s70, 1')
    a('s_cmp_eq_u32 s70, 0')
    a('s_cbranch_scc1 J_tagd')
    a('s_cmp_lg_u32 s71, 0')
    a('s_cbranch_scc1 J_tagd')
    a('buffer_load_dword v9, v1, s[16:19], 0 offen sc1')
    a('s_waitcnt vmcnt(0)')
    a('s_branch J_tag')
    a.label('J_tagd')
    a('s_lshl_b32 s72, s2, 2')
    a(f's_add_u32 s72, s72, {WS_FL2}')
    a('s_mov_b64 exec, 1')
    a('buffer_store_dword v9, v1, s[4:7], s72 offen sc1')
    a('s_mov_b64 exec, -1')
    a(f's_mov_b32 s70, {SPIN_MAX}')
    a('s_cmp_lg_u32 s2, 63')
    a('s_cbranch_scc1 J_poll')
    a('v_lshlrev_b32 v11, 4, v0')
    a(f's_mov_b32 s72, {WS_FL2}')
    a.label('J_coll')
    a('buffer_load_dwordx4 v[12:15], v11, s[4:7], s72 offen sc1')
    a('s_waitcnt vmcnt(0)')
    for r in range(12, 16): a(f'v_xor_b32 v{r}, v{r}, v9')
    a('v_or3_b32 v12, v12, v13, v14')
    a('v_or_b32 v12, v12, v15')
    a('v_cmp_ne_u32 vcc, 0, v12')
    a('s_cbranch_vccz J_colld')
    a('s_sub_u32 s70, s70, 1')
    a('s_cmp_lg_u32 s70, 0')
    a('s_cbranch_scc1 J_coll')
    a.label('J_colld')
    a('v_mov_b32 v9, 1')
    a('s_mov_b64 exec, 1')
    a(f'buffer_store_dword v9, v1, s[16:19], 0 offen offset:{F_GO+64} sc1')
    a('s_mov_b64 exec, -1')
    a('s_branch J_go')
    a.label('J_poll')
    a(f'buffer_load_dword v9, v1, s[16:19], 0 offen offset:{F_GO+64} sc1')
    a('s_waitcnt vmcnt(0)')
    a('v_readfirstlane_b32 s71, v9')
    a('s_cmp_lg_u32 s71, 0')
    a('s_cbranch_scc1 J_go')
    a('s_sub_u32 s70, s70, 1')
    a('s_cmp_eq_u32 s70, 0')
    a('s_cbranch_scc1 J_go')
    a(f's_sleep {os.environ.get("JSLP", "2")}')
    a('s_branch J_poll')
    a.label('J_go')
    return None

SIGMA = int(os.environ.get('SIGMA', '2'))
LSIG = {1: 0, 2: 1, 4: 2, 8: 3}[SIGMA]
FUSE = os.environ.get('FUSE', '1') == '1'
PSTORE = os.environ.get('PSTORE', 'sc1' if FUSE else '')
FLAGS = os.environ.get('FLAGS', '1') == '1'
L2PF = os.environ.get('L2PF', '0')
W2ST = os.environ.get('W2ST', 'sc1')
YST = os.environ.get('YST', '')

M_LN, M_END = 128, 128
M_LDS = 18432 + 1536
def gen_mid(a):
    name = 'mid_kernel'
    kstart(a, name)
    a(f's_cmp_ge_u32 s2, {M_END}')
    a('s_cbranch_scc1 M_done')
    stamp = Stamps(a, 1)
    stamp(); stamp.fork()
    a(f's_load_dwordx2 s[20:21], s[0:1], {KA["ws"]}')
    a(f's_load_dwordx2 s[22:23], s[0:1], {KA["w2"]}')
    a('v_lshrrev_b32 v7, 6, v0')
    a('v_and_b32 v0, 63, v0')
    a('v_readfirstlane_b32 s3, v7')
    a('v_lshlrev_b32 v1, 4, v0')
    a('v_lshrrev_b32 v7, 4, v0')
    def fin():
        if PROF:
            stamp()
            a('s_waitcnt vmcnt(0)')
        stamp.dump(6, 3)
        a('s_endpgm')
    a('s_and_b32 s24, s2, 7')
    a('s_lshr_b32 s25, s2, 3')
    a(f's_lshr_b32 s26, s24, {3-LSIG}')
    a(f's_and_b32 s24, s24, {8//SIGMA - 1}')
    a('s_lshl_b32 s24, s24, 4')
    a('s_add_u32 s25, s25, s24')
    a(f's_mul_i32 s26, s26, {128//SIGMA}')
    a('s_add_u32 s25, s25, s26')
    a('s_mul_i32 s28, s25, 18432')
    a('s_mul_i32 s29, s3, 3072')
    a('s_add_u32 s28, s28, s29')
    a(f's_add_u32 s28, s28, {WS_X2T}')
    a('s_mul_i32 s30, s3, 384')
    a(f's_add_u32 s30, s30, {WS_MOD + 3*2304}')
    a('v_lshlrev_b32 v2, 4, v7')
    a('s_mov_b32 m0, s29')
    a('s_waitcnt lgkmcnt(0)')
    srd(a, 4, 20, SZ['ws'])
    stamp()
    for p in range(3):
        a(f'buffer_load_dwordx4 v1, s[4:7], s28 offen offset:{1024*p} lds')
    CB, SB = 60, 84
    for T in range(6):
        a(f'buffer_load_dwordx4 v[{CB+4*T}:{CB+4*T+3}], v2, s[4:7], s30 offen offset:{2304+64*T}')
        a(f'buffer_load_dwordx4 v[{SB+4*T}:{SB+4*T+3}], v2, s[4:7], s30 offen offset:{64*T}')
    MPF = os.environ.get('MPF', '0') == '1'
    NMPF = 0
    if MPF:
        a('v_lshlrev_b32 v58, 7, v0')
        a('s_and_b32 s34, s2, 7')
        a(f's_and_b32 s34, s34, {8//SIGMA - 1}')
        a(f's_mul_i32 s34, s34, {663552*SIGMA}')
        a('s_lshr_b32 s35, s2, 3')
        a(f's_mul_i32 s35, s35, {41472*SIGMA}')
        a('s_add_u32 s34, s34, s35')
        a(f's_mul_i32 s35, s3, {8192*SIGMA}')
        a('s_add_u32 s34, s34, s35')
        for base in (WS_W1F, WS_W2F):
            for q in range(SIGMA):
                a(f's_add_u32 s35, s34, {base + 8192*q}')
                a('buffer_load_dword v59, v58, s[4:7], s35 offen')
                NMPF += 1
    a('v_lshlrev_b32 v3, 3, v0')
    a('v_add_u32 v3, s29, v3')
    STA = 18432
    a('v_and_b32 v4, 15, v0')
    a('v_lshlrev_b32 v4, 3, v4')
    a(f'v_add_u32 v4, {STA}, v4')
    a('s_lshl_b32 s31, s3, 7')
    a('v_add_u32 v5, s31, v4')
    a('s_lshr_b32 s32, s25, 2')
    a('s_mul_i32 s32, s32, 18')
    a('s_mul_i32 s33, s3, 3')
    a('s_add_u32 s32, s32, s33')
    a('s_lshl_b32 s32, s32, 2')
    a('s_and_b32 s33, s25, 3')
    a('s_add_u32 s32, s32, s33')
    a('s_lshl_b32 s32, s32, 10')
    a(f's_add_u32 s33, s32, {WS_XF}')
    a(f's_add_u32 s32, s32, {WS_YF}')
    X, RAW = 10, 40
    a(f's_waitcnt vmcnt({12+NMPF})')
    stamp()
    for T in range(6):
        a(f'ds_read_b64_tr_b16 v[{RAW+2*T}:{RAW+2*T+1}], v3 offset:{512*T}')
    for k in range(12):
        if k % 2 == 0: a(f's_waitcnt lgkmcnt({5 - k//2})')
        unpack(a, X + 2*k, X + 2*k + 1, RAW + k)
    for k in range(3):
        a(f'buffer_store_dwordx4 v[{RAW+4*k}:{RAW+4*k+3}], v1, s[4:7], s33 offen')
        if k < 2: a('s_add_u32 s33, s33, 4096')
    def sums():
        a(f'v_pk_add_f32 v[52:53], v[{X}:{X+1}], v[{X+2}:{X+3}]')
        a(f'v_pk_mul_f32 v[54:55], v[{X}:{X+1}], v[{X}:{X+1}]')
        a(f'v_pk_mul_f32 v[56:57], v[{X+2}:{X+3}], v[{X+2}:{X+3}]')
        for k in range(2, 12):
            x = X + 2*k; q = 54 + 2*(k & 1)
            a(f'v_pk_add_f32 v[52:53], v[52:53], v[{x}:{x+1}]')
            a(f'v_pk_fma_f32 v[{q}:{q+1}], v[{x}:{x+1}], v[{x}:{x+1}], v[{q}:{q+1}]')
        a('v_pk_add_f32 v[54:55], v[54:55], v[56:57]')
    def reduce_stats(rnd):
        a('v_add_f32 v52, v52, v53')
        a('v_add_f32 v53, v54, v55')
        for sw in ('v_permlane16_swap_b32', 'v_permlane32_swap_b32'):
            a('v_mov_b32 v54, v52')
            a('v_mov_b32 v55, v53')
            a(f'{sw} v52, v54')
            a(f'{sw} v53, v55')
            a('v_pk_add_f32 v[52:53], v[52:53], v[54:55]')
        a(f'ds_write_b64 v5, v[52:53] offset:{768*rnd}')
        a('s_waitcnt lgkmcnt(0)')
        a('s_barrier')
        for t in range(6):
            a(f'ds_read_b64 v[{108+2*t}:{109+2*t}], v4 offset:{768*rnd+128*t}')
        a('s_waitcnt lgkmcnt(0)')
        a('v_pk_add_f32 v[108:109], v[108:109], v[110:111]')
        a('v_pk_add_f32 v[112:113], v[112:113], v[114:115]')
        a('v_pk_add_f32 v[116:117], v[116:117], v[118:119]')
        a('v_pk_add_f32 v[108:109], v[108:109], v[112:113]')
        a('v_pk_add_f32 v[6:7], v[108:109], v[116:117]')
        a(f'v_mul_f32 v6, {f32(1/576)}, v6')
        a(f'v_mul_f32 v7, {f32(1/576)}, v7')
        a('v_fma_f32 v7, -v6, v6, v7')
        a('v_max_f32 v7, 0, v7')
        ln_scalars(a, 6, 7, None)
        a('v_mul_f32 v8, v6, v7')
        a('v_mov_b32 v6, v7')
    NORM = 'op_sel_hi:[1,0,0] neg_lo:[0,0,1] neg_hi:[0,0,1]'
    sums()
    reduce_stats(0)
    stamp()
    a(f's_waitcnt vmcnt({3+NMPF})')
    for k in range(12):
        x = X + 2*k
        a(f'v_pk_fma_f32 v[{x}:{x+1}], v[{x}:{x+1}], v[6:7], v[8:9] {NORM}')
    for k in range(12):
        x = X + 2*k
        a(f'v_pk_fma_f32 v[{x}:{x+1}], v[{x}:{x+1}], v[{CB+2*k}:{CB+2*k+1}], v[{SB+2*k}:{SB+2*k+1}]')
    sums()
    reduce_stats(1)
    stamp()
    for k in range(12):
        x = X + 2*k
        a(f'v_pk_fma_f32 v[{x}:{x+1}], v[{x}:{x+1}], v[6:7], v[8:9] {NORM}')
    for k in range(12):
        a(f'v_cvt_pk_bf16_f32 v{RAW+k}, v{X+2*k}, v{X+2*k+1}')
        if k % 4 == 3:
            a(f'buffer_store_dwordx4 v[{RAW+k-3}:{RAW+k}], v1, s[4:7], s32 offen {YST}')
            if k < 11: a('s_add_u32 s32, s32, 4096')
    fin()
    a.label('M_done')
    a('s_endpgm')
    return name, a.maxv + 1, a.maxs + 1

def final_params(a):
    a('v_lshlrev_b32 v2, 4, v7')
    a('s_lshl_b32 s29, s31, 6')
    a(f's_add_u32 s29, s29, {WS_MOD + 5*2304}')
    a(f'buffer_load_dwordx4 v[46:49], v2, s[4:7], s29 offen {HS}')
    a('v_lshlrev_b32 v3, 3, v7')
    a('s_lshl_b32 s29, s31, 5')
    a('buffer_load_dwordx2 v[54:55], v3, s[8:11], s29 offen')
    a('v_and_b32 v5, 1, v7')
    a('v_and_b32 v4, 15, v0')
    a('v_lshl_add_u32 v4, v5, 4, v4')
    a('v_mul_u32_u24 v4, 1152, v4')
    a('v_lshrrev_b32 v5, 1, v7')
    a('v_lshl_add_u32 v4, v5, 4, v4')
    a('s_mul_i32 s30, s26, 73728')
    a('s_mul_i32 s29, s32, 36864')
    a('s_add_u32 s30, s30, s29')
    a('s_lshl_b32 s29, s31, 5')
    a('s_add_u32 s30, s30, s29')
    a('s_mul_i32 s33, s26, 18')
    a('s_lshr_b32 s29, s31, 1')
    a('s_add_u32 s33, s33, s29')
    a('s_lshl_b32 s33, s33, 1')
    a('s_add_u32 s33, s33, s32')
    a('s_lshl_b32 s33, s33, 11')
    a('s_and_b32 s29, s31, 1')
    a('s_lshl_b32 s29, s29, 3')
    a('s_add_u32 s33, s33, s29')
    a(f's_add_u32 s33, s33, {WS_XF}')

def final_loads(a, unit_off, fl):
    a(f's_add_u32 s28, {unit_off}, {WS_PART}')
    for s in range(8):
        a(f'buffer_load_dwordx4 v[{10+4*s}:{13+4*s}], v1, s[4:7], s28 offen {fl}')
        if s < 7: a(f's_add_u32 s28, s28, {PSZ}')
    a(f'buffer_load_dwordx2 v[42:43], v1, s[4:7], s33 offen {fl}')
    a(f'buffer_load_dwordx2 v[44:45], v1, s[4:7], s33 offen offset:1024 {fl}')

def final_math(a, n0):
    S = 60
    a(f's_waitcnt vmcnt({n0})')
    for j in range(4): unpack(a, S + 2*j, S + 2*j + 1, 10 + j)
    unpack(a, 50, 51, 54); unpack(a, 52, 53, 55)
    for s in range(1, 8):
        a(f's_waitcnt vmcnt({n0-s})')
        for j in range(4): unpack(a, 68 + 2*j, 69 + 2*j, 10 + 4*s + j)
        for j in range(4): a(f'v_pk_add_f32 v[{S+2*j}:{S+2*j+1}], v[{S+2*j}:{S+2*j+1}], v[{68+2*j}:{69+2*j}]')
    def rnd():
        for j in range(4): a(f'v_cvt_pk_bf16_f32 v{76+j}, v{S+2*j}, v{S+2*j+1}')
        for j in range(4): unpack(a, S + 2*j, S + 2*j + 1, 76 + j)
    rnd()
    for j in range(4): a(f'v_pk_add_f32 v[{S+2*j}:{S+2*j+1}], v[{S+2*j}:{S+2*j+1}], v[{50+2*(j&1)}:{51+2*(j&1)}]')
    rnd()
    for j in range(4): a(f'v_pk_mul_f32 v[{S+2*j}:{S+2*j+1}], v[{S+2*j}:{S+2*j+1}], v[{46+2*(j&1)}:{47+2*(j&1)}]')
    rnd()
    a('s_waitcnt vmcnt(0)')
    for j in range(4): unpack(a, 68 + 2*j, 69 + 2*j, 42 + j)
    for j in range(4): a(f'v_pk_add_f32 v[{S+2*j}:{S+2*j+1}], v[{S+2*j}:{S+2*j+1}], v[{68+2*j}:{69+2*j}]')
    for j in range(4): a(f'v_cvt_pk_bf16_f32 v{76+j}, v{S+2*j}, v{S+2*j+1}')
    a('v_permlane16_swap_b32 v76, v78')
    a('v_permlane16_swap_b32 v77, v79')
    a(f'buffer_store_dwordx4 v[76:79], v4, s[12:15], s30 offen {os.environ.get("OST", "")}')

YF, HF, ST = 0, 73728, 147456
PRM = ST + 3072
CNT = PRM + 5120
SCR = CNT + 64
C_LDS = SCR + 1024
def gen_mlp(a):
    name = NAME + '_kernel' if ONEK else 'mlp_kernel'
    if not ONEK: kstart(a, name)
    ACC, BFR, RING = 8, 56, 88
    RD = int(os.environ.get('RD', '5'))
    if not ONEK:
        a('s_cmp_ge_u32 s2, 256')
        a('s_cbranch_scc1 C_done')
    stamp0 = Stamps(a, 2)
    stamp0()
    FINE = os.environ.get('FINE', '0') == '1'
    class _S:
        def __call__(self):
            if not FINE: stamp0()
        def dump(self, *x): stamp0.dump(*x)
    stamp = _S()
    if DIAG: a('s_memrealtime s[96:97]')
    def rt(i):
        if DIAG:
            a('s_waitcnt lgkmcnt(0)')
            a('s_memrealtime s[88:89]')
            a('s_waitcnt lgkmcnt(0)')
            a(f's_mov_b32 s{90+i}, s88')
    a(f's_load_dwordx2 s[20:21], s[0:1], {KA["ws"]}')
    a(f's_load_dwordx2 s[22:23], s[0:1], {KA["b1"]}')
    if W2M: a(f's_load_dwordx2 s[64:65], s[0:1], {KA["w2"]}')
    if FUSE:
        a(f's_load_dwordx2 s[52:53], s[0:1], {KA["b2"]}')
        a(f's_load_dwordx2 s[54:55], s[0:1], {KA["out"]}')
    a(f's_setprio {os.environ.get("P1PRIO", "2")}')
    a('v_lshrrev_b32 v7, 6, v0')
    a('v_and_b32 v0, 63, v0')
    a('v_readfirstlane_b32 s3, v7')
    a('s_and_b32 s26, s2, 7')
    a('s_lshr_b32 s27, s2, 3')
    a(f's_and_b32 s24, s26, {8//SIGMA - 1}')
    a(f's_lshl_b32 s24, s24, {LSIG}')
    a(f's_and_b32 s25, s27, {SIGMA - 1}')
    a('s_add_u32 s24, s24, s25')
    a(f's_lshr_b32 s42, s27, {LSIG}')
    a(f's_lshr_b32 s25, s26, {3-LSIG}')
    a(f's_mul_i32 s25, s25, {32//SIGMA}')
    a('s_add_u32 s25, s25, s42')
    a('v_lshlrev_b32 v1, 4, v0')
    a('s_lshr_b32 s27, s3, 2')
    a('s_mov_b32 s65, s27')
    if os.environ.get('XROT', '0') == '1' and not ONEK:
        a('s_sub_u32 s26, 2, s27')
        a('s_bitcmp1_b32 s24, 0')
        a('s_cselect_b32 s65, s26, s27')
    a('s_and_b32 s26, s3, 3')
    if ONEK:
        a('s_mul_i32 s28, s25, 73728')
        a('s_mul_i32 s29, s3, 6144')
        a('s_add_u32 s28, s28, s29')
        a(f's_add_u32 s28, s28, {WS_X2T}')
        a('s_add_u32 s30, s28, 4096')
        a(f's_add_u32 s29, s29, {HF}')
        a('s_add_u32 s31, s29, 4096')
        a('v_lshrrev_b32 v10, 4, v0')
        a('v_lshlrev_b32 v10, 5, v10')
        a('v_xor_b32 v10, v10, v1')
        a('v_and_b32 v10, 0x70, v10')
        a('v_and_b32 v11, 0x380, v1')
        a('v_or_b32 v10, v10, v11')
    else:
        a('s_lshl_b32 s28, s25, 2')
        a('s_add_u32 s28, s28, s26')
        a('s_mul_i32 s28, s28, 18432')
        a('s_mul_i32 s29, s65, 6144')
        a('s_add_u32 s28, s28, s29')
        a(f's_add_u32 s28, s28, {WS_X2T}')
        a('s_add_u32 s30, s28, 4096')
        a('s_mul_i32 s29, s3, 6144')
        a(f's_add_u32 s29, s29, {HF}')
        a('s_add_u32 s31, s29, 4096')
    a('s_min_u32 s34, s3, 4')
    a('s_lshl_b32 s34, s34, 10')
    a('v_mov_b32 v8, 0')
    a(f'v_mov_b32 v9, {CNT}')
    a('v_and_b32 v2, 15, v0')
    a('v_lshl_add_u32 v9, v2, 2, v9')
    a('ds_write_b32 v9, v8')
    a('v_lshrrev_b32 v7, 4, v0')
    a('v_lshlrev_b32 v2, 3, v7')
    a('s_mul_i32 s32, s24, 1152')
    a('s_mul_i32 s33, s3, 96')
    a('s_add_u32 s32, s32, s33')
    a('s_mov_b32 m0, s29')
    a('s_waitcnt lgkmcnt(0)')
    srd(a, 4, 20, SZ['ws']); srd(a, 8, 22, SZ['b1'])
    rt(0)
    stamp()
    XA = 10 if ONEK else 1
    if ONEK: a('s_barrier')
    for p in range(4):
        a(f'buffer_load_dwordx4 v{XA}, s[4:7], s28 offen offset:{1024*p} {HS} lds')
    a('s_mov_b32 m0, s31')
    a('s_mul_i32 s31, s24, 12')
    for p in range(2):
        a(f'buffer_load_dwordx4 v{XA}, s[4:7], s30 offen offset:{1024*p} {HS} lds')
    a(f's_add_u32 m0, s34, {PRM}')
    a(f's_add_u32 s34, s34, {WS_MOD + 3*2304}')
    a(f'buffer_load_dwordx4 v1, s[4:7], s34 offen {HS} lds')
    for i in range(3):
        a(f'buffer_load_dwordx2 v[{150+4*i}:{151+4*i}], v2, s[8:11], s32 offen offset:{32*i}')
    a('s_add_u32 s31, s31, s3')
    a('s_mul_i32 s31, s31, 55296')
    a(f's_add_u32 s40, s31, {WS_W1F}')
    a(f's_add_u32 s41, s31, {WS_W2F}')
    ROT = os.environ.get('ROT', '0') == '1'
    if ROT:
        a(f's_mul_hi_u32 s44, s42, {(2**32 + 17) // 18}')
        a('s_mul_i32 s44, s44, 18')
        a('s_sub_u32 s44, s42, s44')
        a(f's_mul_hi_u32 s45, s42, {(2**32 + 5) // 6}')
        a('s_mul_i32 s45, s45, 6')
        a('s_sub_u32 s45, s42, s45')
        a('s_mov_b32 s46, s40')
        a('s_add_u32 s47, s40, 55296')
        a('s_mul_i32 s48, s44, 3072')
        a('s_add_u32 s40, s40, s48')
        a('s_mul_i32 s49, s45, 3072')
        a('s_lshl_b32 s50, s44, 12')
        a('s_lshl_b32 s51, s45, 12')
    def adv(step):
        if not ROT:
            return 's_mov_b32 s40, s41' if step == 18 else 's_add_u32 s40, s40, 3072'
        if step >= 18 and (step - 18) % 6 == 0:
            gb = (step - 18) * 3072
            return f's_add_u32 s46, s41, {gb}\ns_add_u32 s47, s41, {gb + 18432}\ns_add_u32 s40, s46, s49'
        return 's_add_u32 s40, s40, 3072\ns_cmp_eq_u32 s40, s47\ns_cselect_b32 s40, s46, s40'
    ringq = []
    for st in range(5):
        base = RING + 12 * st
        for i in range(3):
            ringq.append(f'buffer_load_dwordx4 v[{base+4*i}:{base+4*i+3}], v1, s[4:7], s40 offen offset:{1024*i} {HS}' + (('\n' + adv(st + 1)) if i == 2 else ''))
    def ring_issue(n=1):
        for _ in range(n):
            if ringq: a(ringq.pop(0))
    def l2pf():
        if L2PF == '0': return
        share = 663552 * SIGMA // 32
        if L2PF == '1':
            NPF = -(-share // 6144); stride = 1024; va = 1; op = 'buffer_load_dwordx4'
        else:
            stride = 64 * int(L2PF); NPF = -(-share // (6 * stride)); va = 3; op = 'buffer_load_dword'
            a(f'v_mul_u32_u24 v3, {int(L2PF)}, v0')
        a(f's_mov_b32 s33, {WS_W1F}')
        a('s_cmp_ge_u32 s3, 6')
        a(f's_cselect_b32 s33, {WS_W2F - 6*NPF*stride}, s33')
        a(f's_mul_i32 s34, s3, {NPF*stride}')
        a('s_add_u32 s33, s33, s34')
        a('s_mul_i32 s34, s24, 663552')
        a('s_add_u32 s33, s33, s34')
        a(f's_mul_i32 s34, s42, {share}')
        a('s_add_u32 s33, s33, s34')
        a(f's_mov_b32 m0, {SCR}')
        for i in range(NPF):
            a(f'{op} v{va}, s[4:7], s33 offen lds')
            if i < NPF - 1: a(f's_add_u32 s33, s33, {stride}')
    if ONEK:
        a('v_lshrrev_b32 v2, 2, v0')
        a('v_lshrrev_b32 v3, 1, v2')
        a('v_and_b32 v3, 3, v3')
        a('v_xor_b32 v3, s26, v3')
        a('v_lshlrev_b32 v3, 5, v3')
        a('v_lshl_add_u32 v3, v2, 7, v3')
        a('v_and_b32 v2, 3, v0')
        a('v_lshl_add_u32 v3, v2, 3, v3')
        a('s_mul_i32 s31, s27, 24576')
        a(f's_add_u32 s31, s31, {HF}')
        a('v_add_u32 v3, s31, v3')
    else:
        a('v_lshlrev_b32 v3, 3, v0')
        a('v_add_u32 v3, s29, v3')
    a('v_and_b32 v4, 15, v0')
    a('s_lshl_b32 s31, s26, 7')
    a(f's_add_u32 s31, s31, {ST}')
    a('v_lshlrev_b32 v4, 3, v4')
    a('v_add_u32 v4, s31, v4')
    a('s_lshl_b32 s31, s65, 9')
    a('v_add_u32 v5, s31, v4')
    a('s_mul_i32 s31, s65, 768')
    a(f's_add_u32 s31, s31, {PRM}')
    a('v_lshlrev_b32 v2, 4, v7')
    a('v_add_u32 v2, s31, v2')
    a('s_mul_i32 s32, s25, 18')
    a('s_mul_i32 s33, s65, 6')
    a('s_add_u32 s32, s32, s33')
    a('s_lshl_b32 s32, s32, 2')
    a('s_add_u32 s32, s32, s26')
    a('s_lshl_b32 s32, s32, 10')
    a(f's_add_u32 s32, s32, {WS_XF}')
    a('s_mul_i32 s31, s65, 24576')
    a('s_lshl_b32 s33, s26, 10')
    a('s_add_u32 s31, s31, s33')
    a('v_add_u32 v87, s31, v1')
    RAW = 56
    S0, Q0, Q1 = 80, 82, 84
    def acc_sums(k, first):
        x = ACC + 2*k
        q = Q0 if k & 1 == 0 else Q1
        if k == 1: a(f'v_pk_add_f32 v[{S0}:{S0+1}], v[{x-2}:{x-1}], v[{x}:{x+1}]')
        elif k > 1: a(f'v_pk_add_f32 v[{S0}:{S0+1}], v[{S0}:{S0+1}], v[{x}:{x+1}]')
        if k < 2: a(f'v_pk_mul_f32 v[{q}:{q+1}], v[{x}:{x+1}], v[{x}:{x+1}]')
        else: a(f'v_pk_fma_f32 v[{q}:{q+1}], v[{x}:{x+1}], v[{x}:{x+1}], v[{q}:{q+1}]')
    if ONEK:
        a(f'v_mov_b32 v6, {CNT + 52}')
        a('s_lshl_b32 s31, s27, 2')
        a('v_add_u32 v6, s31, v6')
        a('v_mov_b32 v9, 1')
        a('s_waitcnt vmcnt(4)')
        a('s_mov_b64 exec, 1')
        a('ds_add_u32 v6, v9')
        a('s_mov_b64 exec, -1')
        a.label('C_xp')
        a('ds_read_b32 v9, v6')
        a('s_waitcnt lgkmcnt(0)')
        a('v_readfirstlane_b32 s38, v9')
        a('s_cmp_lt_u32 s38, 4')
        a('s_cbranch_scc1 C_xp')
        for T in range(12):
            a(f'ds_read_b64_tr_b16 v[{RAW+2*T}:{RAW+2*T+1}], v3 offset:{2048*T}')
    for p in range(6):
        if ONEK:
            a(f's_waitcnt lgkmcnt({10 - p if p < 5 else 5})')
        else:
            a(f's_waitcnt vmcnt({9-p})')
            for T in (2*p, 2*p + 1):
                a(f'ds_read_b64_tr_b16 v[{RAW+2*T}:{RAW+2*T+1}], v3 offset:{512*T}')
            a('s_waitcnt lgkmcnt(0)')
        if FUSE: a(f'ds_write_b128 v87, v[{RAW+4*p}:{RAW+4*p+3}] offset:{YF+4096*p}')
        for k in range(4*p, 4*p + 4): unpack(a, ACC + 2*k, ACC + 2*k + 1, RAW + k)
        for k in range(4*p, 4*p + 4): acc_sums(k, True)
    stamp()
    if FUSE and os.environ.get('TLB', '0') == '1':
        a('s_cmp_lg_u32 s3, 0')
        a('s_cbranch_scc1 C_notlb')
        srd(a, 12, 54, SZ['out']); srd(a, 16, 52, SZ['b2'])
        a('v_and_b32 v88, 7, v0')
        a(f's_mov_b32 s33, {PSZ}')
        a('v_mul_lo_u32 v88, v88, s33')
        a('v_bfe_u32 v89, v0, 3, 1')
        a('v_lshl_add_u32 v88, v89, 16, v88')
        a(f'v_add_u32 v88, {WS_PART}, v88')
        a('s_mul_i32 s33, s25, 73728')
        a('v_add_u32 v88, s33, v88')
        a('v_lshrrev_b32 v90, 1, v0')
        a('v_min_u32 v90, 10, v90')
        a('v_lshlrev_b32 v90, 16, v90')
        a('s_mul_i32 s34, s24, 663552')
        a(f's_add_u32 s34, s34, {WS_W2F}')
        a('v_add_u32 v90, s34, v90')
        a('v_cmp_lt_u32 vcc, 31, v0')
        a('v_subrev_u32 v91, 0x100000, v90')
        a('v_lshrrev_b32 v90, 1, v0')
        a('v_subrev_u32 v90, 16, v90')
        a('v_min_u32 v90, 10, v90')
        a('v_lshlrev_b32 v90, 16, v90')
        a('v_add_u32 v90, s34, v90')
        a('v_cndmask_b32 v88, v88, v90, vcc')
        a(f's_mov_b32 m0, {SCR}')
        a('v_lshlrev_b32 v89, 16, v89')
        a('buffer_load_dword v88, s[4:7], 0 offen sc1 lds')
        a('buffer_load_dword v89, s[12:15], s33 offen lds')
        a('v_mov_b32 v89, 0')
        a('buffer_load_dword v89, s[16:19], 0 offen lds')
        a.label('C_notlb')
    def reduce_stats(rnd, mid=None):
        a(f'v_pk_add_f32 v[{Q0}:{Q0+1}], v[{Q0}:{Q0+1}], v[{Q1}:{Q1+1}]')
        a(f'v_add_f32 v{S0}, v{S0}, v{S0+1}')
        a(f'v_add_f32 v{S0+1}, v{Q0}, v{Q0+1}')
        for sw in ('v_permlane16_swap_b32', 'v_permlane32_swap_b32'):
            a(f'v_mov_b32 v{Q0}, v{S0}')
            a(f'v_mov_b32 v{Q0+1}, v{S0+1}')
            a(f'{sw} v{S0}, v{Q0}')
            a(f'{sw} v{S0+1}, v{Q0+1}')
            a(f'v_pk_add_f32 v[{S0}:{S0+1}], v[{S0}:{S0+1}], v[{Q0}:{Q0+1}]')
        a(f'ds_write_b64 v5, v[{S0}:{S0+1}] offset:{1536*rnd}')
        if rnd == 0: a('s_waitcnt vmcnt(3) lgkmcnt(0)')
        else: a('s_waitcnt lgkmcnt(0)')
        a('s_barrier')
        for t in range(3):
            a(f'ds_read_b64 v[{S0+2*t}:{S0+2*t+1}], v4 offset:{1536*rnd+512*t}')
        n = mid() if mid else 0
        a(f's_waitcnt lgkmcnt({n})')
        a(f'v_pk_add_f32 v[6:7], v[{S0}:{S0+1}], v[{S0+2}:{S0+3}]')
        a(f'v_pk_add_f32 v[6:7], v[6:7], v[{S0+4}:{S0+5}]')
        a(f'v_mul_f32 v6, {f32(1/576)}, v6')
        a(f'v_mul_f32 v7, {f32(1/576)}, v7')
        a('v_fma_f32 v7, -v6, v6, v7')
        a('v_max_f32 v7, 0, v7')
        ln_scalars(a, 6, 7, None)
        a('v_mul_f32 v86, v6, v7')
        a('v_mov_b32 v6, v7')
    NORM = 'op_sel_hi:[1,0,0] neg_lo:[0,0,1] neg_hi:[0,0,1]'
    psets = [RAW, RAW + 8, RAW + 16]
    def pread(T):
        p = psets[T % 3]
        a(f'ds_read_b128 v[{p}:{p+3}], v2 offset:{2304+64*T}')
        a(f'ds_read_b128 v[{p+4}:{p+7}], v2 offset:{64*T}')
    if FUSE:
        a('s_mul_i32 s61, s24, 3')
        a('s_min_u32 s33, s26, 2')
        a('s_add_u32 s61, s61, s33')
        a('s_lshr_b32 s33, s61, 2')
        a('s_lshl_b32 s33, s33, 12')
        a('s_and_b32 s34, s61, 1')
        a('s_lshl_b32 s34, s34, 11')
        a('s_add_u32 s33, s33, s34')
        a('s_bfe_u32 s34, s61, 0x10001')
        a('s_lshl_b32 s34, s34, 3')
        a('s_add_u32 s33, s33, s34')
        a('s_mul_i32 s34, s27, 24576')
        a('s_add_u32 s33, s33, s34')
        a('v_add_u32 v166, s33, v1')
    else:
        a('s_cmp_lg_u32 s24, 0')
        a('s_cbranch_scc1 C_noxf')
        for k in range(6):
            a(f'buffer_store_dwordx4 v[{RAW+4*k}:{RAW+4*k+3}], v1, s[4:7], s32 offen {PSTORE}')
            if k < 5: a('s_add_u32 s32, s32, 4096')
        a('s_waitcnt vmcnt(9)')
        a.label('C_noxf')
    def mid0():
        if FUSE:
            a(f'ds_read_b64 v[162:163], v166 offset:{YF}')
            a(f'ds_read_b64 v[164:165], v166 offset:{YF+1024}')
        for T in range(3): pread(T)
        if W2M:
            a('s_mov_b32 s66, -1')
            a('s_cmp_lt_u32 s3, 8')
            a('s_cbranch_scc1 C_now2')
            a('s_lshl_b32 s66, s25, 1')
            a('s_add_u32 s66, s66, s26')
            a('s_cmp_lt_u32 s26, 2')
            a('s_cbranch_scc1 C_w2u')
            a('s_add_u32 s66, s25, 64')
            a('s_lshl_b32 s67, s26, 5')
            a('s_add_u32 s67, s67, s25')
            a('s_cmp_lt_u32 s67, 72')
            a('s_cselect_b32 s66, s66, -1')
            a('s_cbranch_scc0 C_now2')
            a.label('C_w2u')
            srd(a, 16, 64, SZ['w2'])
            a('s_lshr_b32 s67, s66, 2')
            a('s_and_b32 s68, s66, 3')
            a('s_mul_i32 s69, s24, 18')
            a('s_add_u32 s69, s69, s67')
            a('s_mul_i32 s69, s69, 36864')
            a('s_mul_i32 s70, s68, 288')
            a('s_add_u32 s69, s69, s70')
            a('s_mul_i32 s70, s24, 663552')
            a('s_mul_i32 s67, s67, 3072')
            a('s_add_u32 s70, s70, s67')
            a('s_mul_i32 s68, s68, 165888')
            a('s_add_u32 s70, s70, s68')
            a(f's_add_u32 s70, s70, {WS_W2F}')
            a('s_mul_i32 s71, s26, 9216')
            a(f's_add_u32 s71, s71, {HF + 24576}')
            a(f's_mov_b32 s67, {(2**32 + 17) // 18}')
            for k in range(9):
                a(f'v_add_u32 v136, {64*k}, v0')
                a('v_mul_hi_u32 v137, v136, s67')
                a('v_mul_u32_u24 v138, 18, v137')
                a('v_sub_u32 v136, v136, v138')
                a('v_mul_u32_u24 v137, 1152, v137')
                a(f's_add_u32 m0, s71, {1024*k}')
                a('v_lshl_add_u32 v136, v136, 4, v137')
                a('buffer_load_dwordx4 v136, s[16:19], s69 offen lds')
            a.label('C_now2')
        ring_issue(3)
        return 8 if FUSE else 6
    reduce_stats(0, mid0)
    stamp()
    for T in range(12):
        p = psets[T % 3]
        a(f's_waitcnt lgkmcnt({min(4, 2*(11-T))})')
        for hh in range(2):
            x = ACC + 4*T + 2*hh
            a(f'v_pk_fma_f32 v[{x}:{x+1}], v[{x}:{x+1}], v[6:7], v[86:87] {NORM}')
        for hh in range(2):
            x = ACC + 4*T + 2*hh
            a(f'v_pk_fma_f32 v[{x}:{x+1}], v[{x}:{x+1}], v[{p+2*hh}:{p+2*hh+1}], v[{p+4+2*hh}:{p+4+2*hh+1}]')
        if T + 3 < 12: pread(T + 3)
        if T % 2 == 1: ring_issue()
        acc_sums(2*T, False); acc_sums(2*T + 1, False)
    def mid1():
        ring_issue(3)
        return 0
    reduce_stats(1, mid1)
    stamp()
    for k in range(6):
        for j in range(4):
            x = ACC + 8*k + 2*j
            a(f'v_pk_fma_f32 v[{x}:{x+1}], v[{x}:{x+1}], v[6:7], v[86:87] {NORM}')
        for j in range(4):
            x = ACC + 8*k + 2*j
            a(f'v_cvt_pk_bf16_f32 v{RAW+4*(k&1)+j}, v{x}, v{x+1}')
        a(f'ds_write_b128 v87, v[{RAW+4*(k&1)}:{RAW+4*(k&1)+3}] offset:{YF+4096*k}')
        if k % 2 == 1: ring_issue()
    BIAS = 148
    a(f's_waitcnt vmcnt({15 - len(ringq)})')
    for i in range(3):
        unpack(a, BIAS + 4*i, BIAS + 4*i + 1, BIAS + 4*i + 2)
        a(f'v_lshlrev_b32 v{BIAS+4*i+2}, 16, v{BIAS+4*i+3}')
        a(f'v_and_b32 v{BIAS+4*i+3}, 0xffff0000, v{BIAS+4*i+3}')
    a(f'v_add_u32 v4, {HF}, v1')
    a(f'v_add_u32 v5, {HF+65536}, v1')
    a(f'v_mov_b32 v6, {CNT}')
    a('v_mov_b32 v7, 1')
    ring_issue(15)
    l2pf()
    a(f'v_add_u32 v3, 65536, v1')
    a('s_waitcnt lgkmcnt(0)')
    a('s_barrier')
    if W2M:
        a('s_lshl_b32 s67, s24, 9')
        a(f's_add_u32 s67, s67, {WS_FW2}')
        a('v_min_u32 v161, 35, v0')
        a('v_lshlrev_b32 v161, 3, v161')
        a('s_cmp_eq_u32 s66, -1')
        a('s_cbranch_scc1 C_now2b')
        a('v_lshrrev_b32 v2, 2, v0')
        a('v_mul_u32_u24 v2, 288, v2')
        a('v_and_b32 v8, 3, v0')
        a('v_lshl_add_u32 v2, v8, 3, v2')
        a('v_add_u32 v2, s71, v2')
        a('s_waitcnt vmcnt(15)')
        for k in range(9):
            a(f'ds_read_b64_tr_b16 v[{8+4*k}:{9+4*k}], v2 offset:{32*k}')
            a(f'ds_read_b64_tr_b16 v[{10+4*k}:{11+4*k}], v2 offset:{32*k+16*288}')
        for k in range(9):
            a(f's_waitcnt lgkmcnt({min(15, 16-2*k)})')
            a(f'buffer_store_dwordx4 v[{8+4*k}:{11+4*k}], v1, s[4:7], s70 offen offset:{1024*(k%3)} sc1')
            if k % 3 == 2 and k < 8: a('s_add_u32 s70, s70, 55296')
        a('s_mov_b64 exec, 1')
        a('ds_add_u32 v6, v7 offset:48')
        a('s_mov_b64 exec, -1')
        a('s_lshl_b32 s68, s66, 2')
        a('v_mov_b32 v2, s68')
        a('s_waitcnt vmcnt(0)')
        a('s_mov_b64 exec, 1')
        a('buffer_store_dword v7, v2, s[4:7], s67 offen sc1')
        a('s_mov_b64 exec, -1')
        a('s_branch C_now2c')
        a.label('C_now2b')
        a('s_cmp_lt_u32 s3, 8')
        a('s_cbranch_scc1 C_now2c')
        a('s_mov_b64 exec, 1')
        a('ds_add_u32 v6, v7 offset:48')
        a('s_mov_b64 exec, -1')
        a.label('C_now2c')
    def poll(kk):
        lp, ld = a.newlabel('C_poll'), a.newlabel('C_go')
        a.label(lp)
        a(f'ds_read_b32 v2, v6 offset:{4*(kk//6)}')
        a('s_waitcnt lgkmcnt(0)')
        a('v_readfirstlane_b32 s38, v2')
        a('s_cmp_ge_u32 s38, 4')
        a(f's_cbranch_scc1 {ld}')
        a('s_sleep 2')
        a(f's_branch {lp}')
        a.label(ld)
    def breads(ph, kk):
        buf = kk & 1
        lo, hi = (1, 3) if ph == 0 else (4, 5)
        L = []
        if ROT:
            if ph == 0:
                pre = '' if kk == 0 else 's_add_u32 s50, s50, 4096\ns_cmp_eq_u32 s50, 73728\ns_cselect_b32 s50, 0, s50\n'
            elif kk % 6 == 0:
                pre = f's_add_u32 s50, s51, {HF + 4096*kk}\n'
            else:
                e = HF + 4096 * (kk - kk % 6)
                pre = f's_add_u32 s50, s50, 4096\ns_cmp_eq_u32 s50, {e + 24576}\ns_cselect_b32 s50, {e}, s50\n'
            pre += 'v_add_u32 v3, s50, v1\n'
            for tt in range(4):
                L.append((pre if tt == 0 else '') + f'ds_read_b128 v[{BFR+16*buf+4*tt}:{BFR+16*buf+4*tt+3}], v3 offset:{1024*tt}')
            return L
        for tt in range(4):
            off = kk * 4096 + tt * 1024
            v = lo if off < 65536 else hi
            L.append(f'ds_read_b128 v[{BFR+16*buf+4*tt}:{BFR+16*buf+4*tt+3}], v{v} offset:{off % 65536}')
        return L
    P2PRIO = os.environ.get('P2PRIO', '1')
    def phase(ph):
        if ph == 1 and FLAGS: poll(0)
        for l in breads(ph, 0): a(l)
        for kk in range(18):
            step = 18*ph + kk
            if FINE and kk % 3 == 0: stamp0()
            if ph == 1 and P2PRIO == 'prog' and kk in (0, 6, 12): a(f's_setprio {2 - kk//6}')
            if ph == 1 and FLAGS and (kk + 1) % 6 == 0 and kk < 17: poll(kk + 1)
            q = breads(ph, kk + 1) if kk < 17 else []
            if os.environ.get('NOB'): q = []
            issued = min(36, step + RD) if step > 0 else 5
            extra = 0
            if W2M and ph == 0:
                issued = min(18, issued)
                if kk == 15: a('buffer_load_dwordx2 v[166:167], v161, s[4:7], s67 offen sc1')
                if kk >= 15: extra = 1
            a(f's_waitcnt vmcnt({3*(issued - step - 1) + extra}) lgkmcnt(0)')
            base = RING + 12 * (step % RD); buf = kk & 1
            todo = []
            if RD == 6 and step == 0: todo = [5, 6]
            elif step + RD <= 35: todo = [step + RD]
            if W2M and ph == 0 and step + RD >= 18: todo = []
            inl = len(todo) == 1
            for i in range(3):
                for tt in range(4):
                    c = f'v[{ACC+16*i+4*tt}:{ACC+16*i+4*tt+3}]'
                    if kk == 0: cin = f'v[{BIAS+4*i}:{BIAS+4*i+3}]' if ph == 0 else '0'
                    else: cin = c
                    B = BFR + 16*buf + 4*tt
                    if not (os.environ.get('NOM') and kk > 0 and tt > 0): a(f'v_mfma_f32_16x16x32_bf16 {c}, v[{base+4*i}:{base+4*i+3}], v[{B}:{B+3}], {cin}')
                    if q and tt in (0, 2) : a(q.pop(0))
                if inl and not os.environ.get('NOA'):
                    a(f'buffer_load_dwordx4 v[{base+4*i}:{base+4*i+3}], v1, s[4:7], s40 offen offset:{1024*i} {"sc1" if (W2M and ph == 1) or ONEK else ""}')
            if inl:
                if todo[0] + 1 <= 35: a(adv(todo[0] + 1))
            else:
                for t in todo:
                    b2 = RING + 12 * (t % RD)
                    for i in range(3):
                        a(f'buffer_load_dwordx4 v[{b2+4*i}:{b2+4*i+3}], v1, s[4:7], s40 offen offset:{1024*i}')
                    a(adv(t + 1))
    rt(1)
    stamp()
    phase(0)
    rt(2)
    stamp()
    c0 = -2 * 0.7978845608028654 * LOG2E
    c1 = c0 * 0.044715
    def w2fill():
        for st in range(18, 18 + RD):
            b2 = RING + 12 * (st % RD)
            for i in range(3):
                a(f'buffer_load_dwordx4 v[{b2+4*i}:{b2+4*i+3}], v1, s[4:7], s40 offen offset:{1024*i} sc1')
            a(adv(st + 1))
    def w2ready():
        a('v_and_b32 v166, v166, v167')
        a('v_cmp_eq_u32 vcc, 0, v166')
    if W2M:
        a('s_mov_b32 s66, 0')
        a('s_waitcnt vmcnt(0)')
        w2ready()
        a('s_cbranch_vccnz C_w2late')
        w2fill()
        a('s_mov_b32 s66, 1')
        a.label('C_w2late')
    GP = os.environ.get('GPRIO', '0')
    if GP != '': a(f's_setprio {GP}')
    a(f'v_mov_b32 v160, {f32(c1)}')
    GT = BFR + 24
    PK = BFR
    tiles = [(tt, i) for tt in range(4) for i in range(3)]
    for q in range(0, 12, 2):
        xs = []; ds = []
        for (tt, i) in tiles[q:q+2]:
            x = ACC + 16*i + 4*tt
            xs += [x, x+1, x+2, x+3]; ds += [PK + 6*tt + 2*i, PK + 6*tt + 2*i + 1]
        for r, x in enumerate(xs): a(f'v_mul_f32 v{GT+r}, v{x}, v{x}')
        for r, x in enumerate(xs): a(f'v_fmaak_f32 v{GT+r}, v{GT+r}, v160, {f32(c0)}')
        for r, x in enumerate(xs): a(f'v_mul_f32 v{GT+r}, v{GT+r}, v{x}')
        for r in range(8): a(f'v_exp_f32 v{GT+r}, v{GT+r}')
        for r in range(8): a(f'v_add_f32 v{GT+r}, 1.0, v{GT+r}')
        for r in range(8): a(f'v_rcp_f32 v{GT+r}, v{GT+r}')
        for r, x in enumerate(xs): a(f'v_mul_f32 v{GT+r}, v{GT+r}, v{x}')
        for j, d in enumerate(ds): a(f'v_cvt_pk_bf16_f32 v{d}, v{GT+2*j}, v{GT+1+2*j}')
    def frag_out(emit128, emit64):
        a('s_bitcmp1_b32 s3, 0')
        lo, le = a.newlabel('C_odd'), a.newlabel('C_end')
        a(f's_cbranch_scc1 {lo}')
        for tt in range(4):
            emit128(PK + 6*tt, 0, tt)
            emit64(PK + 6*tt + 4, 1, tt, 0)
        a(f's_branch {le}')
        a.label(lo)
        for tt in range(4):
            emit64(PK + 6*tt, 0, tt, 8)
            emit128(PK + 6*tt + 2, 1, tt)
        a.label(le)
    if W2M:
        a('s_cmp_lt_u32 s3, 4')
        a('s_cbranch_scc1 C_stg')
        a.label('C_stp')
        a('ds_read_b32 v2, v6 offset:48')
        a('s_waitcnt lgkmcnt(0)')
        a('v_readfirstlane_b32 s38, v2')
        a('s_cmp_ge_u32 s38, 4')
        a('s_cbranch_scc1 C_stg')
        a('s_sleep 2')
        a('s_branch C_stp')
        a.label('C_stg')
    a('s_mul_i32 s35, s3, 3')
    a('s_lshr_b32 s35, s35, 1')
    a('s_lshl_b32 s36, s35, 12')
    a('v_add_u32 v2, s36, v4')
    frag_out(lambda r, dk, tt: a(f'ds_write_b128 v2, v[{r}:{r+3}] offset:{4096*dk+1024*tt}'),
             lambda r, dk, tt, h: a(f'ds_write_b64 v2, v[{r}:{r+1}] offset:{4096*dk+1024*tt+h}'))
    a('s_waitcnt lgkmcnt(0)')
    stamp()
    if FLAGS:
        a('s_lshl_b32 s36, s27, 2')
        a('v_add_u32 v2, s36, v6')
        a('s_mov_b64 exec, 1')
        a('ds_add_u32 v2, v7')
        a('s_mov_b64 exec, -1')
        if P2PRIO == 'grp':
            a('s_setprio 1')
            a('s_cmp_lt_u32 s3, 8')
            a('s_cbranch_scc1 C_pr')
            a('s_setprio 3')
            a.label('C_pr')
        elif P2PRIO != 'prog': a(f's_setprio {P2PRIO or 0}')
        if W2M:
            a('s_cmp_lg_u32 s66, 0')
            a('s_cbranch_scc1 C_w2ok')
            a(f's_mov_b32 s39, {SPIN_MAX}')
            a.label('C_w2p')
            a('buffer_load_dwordx2 v[166:167], v161, s[4:7], s67 offen sc1')
            a('s_waitcnt vmcnt(0)')
            w2ready()
            a('s_cbranch_vccz C_w2go')
            a('s_sub_u32 s39, s39, 1')
            a('s_cmp_eq_u32 s39, 0')
            a('s_cbranch_scc1 C_w2go')
            a('s_sleep 8')
            a('s_branch C_w2p')
            a.label('C_w2go')
            w2fill()
            a.label('C_w2ok')
    else:
        a('s_barrier')
    stamp()
    phase(1)
    a(f's_setprio {os.environ.get("TPRIO", "0")}')
    rt(3)
    stamp()
    a(f's_mul_i32 s36, s24, {PSZ}')
    a('s_mul_i32 s37, s25, 12')
    a('s_add_u32 s37, s37, s3')
    a('s_mul_i32 s37, s37, 6144')
    a('s_add_u32 s36, s36, s37')
    a(f's_add_u32 s36, s36, {WS_PART}')
    a('s_add_u32 s37, s36, 4096')
    if FUSE:
        a('s_and_b32 s60, s3, 3')
        a('s_mul_i32 s62, s60, 6')
        a('s_mul_i32 s63, s24, 3')
        a('s_sub_u32 s62, s62, s63')
        a('s_mul_i32 s63, s27, 3072')
        a('v_add_u32 v2, s63, v1')
    for j in range(6):
        x = ACC + 8*j
        for q in range(4):
            a(f'v_cvt_pk_bf16_f32 v{PK+4*j+q}, v{x+2*q}, v{x+2*q+1}')
        st = f'buffer_store_dwordx4 v[{PK+4*j}:{PK+4*j+3}], v1, s[4:7], s{36 + (j >= 4)} offen offset:{1024*(j%4)} {PSTORE}'
        if not FUSE: a(st); continue
        ll, le = a.newlabel('C_loc'), a.newlabel('C_nx')
        a(f's_add_u32 s63, s62, {j}')
        a('s_cmp_lt_u32 s63, 3')
        a(f's_cbranch_scc1 {ll}')
        a(st)
        a(f's_branch {le}')
        a.label(ll)
        a('s_lshl_b32 s63, s63, 10')
        a('v_add_u32 v3, s63, v2')
        a(f'ds_write_b128 v3, v[{PK+4*j}:{PK+4*j+3}] offset:{YF}')
        a.label(le)
    if FUSE:
        srd(a, 8, 52, SZ['b2']); srd(a, 12, 54, SZ['out'])
        a('s_lshl_b32 s59, s27, 2')
        a('v_add_u32 v6, s59, v6')
        a('s_lshl_b32 s59, s27, 5')
        a('s_mul_i32 s27, s27, 24')
        a('s_mul_i32 s31, s24, 3')
        a('s_add_u32 s27, s27, s31')
        a('s_and_b32 s60, s3, 3')
        a('s_min_u32 s31, s60, 2')
        a('s_add_u32 s27, s27, s31')
        a('s_mul_i32 s56, s25, 72')
        a('s_add_u32 s56, s56, s27')
        a('s_lshl_b32 s56, s56, 10')
        a('s_mov_b32 s26, s25')
        a('s_lshr_b32 s31, s27, 1')
        a('s_and_b32 s32, s27, 1')
        a('v_lshrrev_b32 v7, 4, v0')
        a('v_mov_b32 v87, v2')
        final_params(a)
        a('s_waitcnt vmcnt(0) lgkmcnt(0)')
        stamp()
        a('s_mov_b64 exec, 1')
        a('v_mov_b32 v8, 1')
        a('ds_add_rtn_u32 v9, v6, v8 offset:16')
        a('s_mov_b64 exec, -1')
        a('s_waitcnt lgkmcnt(0)')
        a('v_readfirstlane_b32 s38, v9')
        a(f's_mov_b32 s39, {SPIN_MAX}')
        a('s_cmp_lg_u32 s38, 3')
        a('s_cbranch_scc1 C_wl')
        a('s_lshl_b32 s57, s25, 7')
        a('s_add_u32 s57, s57, s59')
        a(f's_add_u32 s57, s57, {WS_FLG}')
        a('s_lshl_b32 s58, s24, 2')
        a('v_mov_b32 v9, s58')
        a('v_mov_b32 v8, 1')
        a('s_mov_b64 exec, 1')
        a('buffer_store_dword v8, v9, s[4:7], s57 offen sc1')
        a('s_mov_b64 exec, -1')
        a('v_and_b32 v9, 7, v0')
        a('v_lshlrev_b32 v9, 2, v9')
        a.label('C_pg')
        a('buffer_load_dword v8, v9, s[4:7], s57 offen sc1')
        a('s_waitcnt vmcnt(0)')
        a('v_cmp_eq_u32 vcc, 0, v8')
        a('s_cbranch_vccz C_pgd')
        a('s_sub_u32 s39, s39, 1')
        a('s_cmp_eq_u32 s39, 0')
        a('s_cbranch_scc1 C_pgd')
        a('s_sleep 2')
        a('s_branch C_pg')
        a.label('C_pgd')
        a('v_mov_b32 v8, 1')
        a('ds_write_b32 v6, v8 offset:32')
        a('s_cmp_ge_u32 s60, 3')
        a('s_cbranch_scc1 C_fin')
        a('s_branch C_red')
        a.label('C_wl')
        a('s_cmp_ge_u32 s60, 3')
        a('s_cbranch_scc1 C_fin')
        a.label('C_pl')
        a('ds_read_b32 v8, v6 offset:32')
        a('s_waitcnt lgkmcnt(0)')
        a('v_readfirstlane_b32 s38, v8')
        a('s_cmp_lg_u32 s38, 0')
        a('s_cbranch_scc1 C_red')
        a('s_sub_u32 s39, s39, 1')
        a('s_cmp_eq_u32 s39, 0')
        a('s_cbranch_scc1 C_red')
        a('s_sleep 4')
        a('s_branch C_pl')
        a.label('C_red')
        rt(4)
        stamp()
        a('s_min_u32 s63, s60, 2')
        a('s_lshl_b32 s63, s63, 10')
        a('v_add_u32 v3, s63, v87')
        a(f'ds_read_b128 v[10:13], v3 offset:{YF}')
        a(f's_add_u32 s28, s56, {WS_PART}')
        for k in range(1, 8):
            a(f's_add_u32 s63, s24, {k}')
            a('s_and_b32 s63, s63, 7')
            a(f's_mul_i32 s63, s63, {PSZ}')
            a('s_add_u32 s63, s63, s28')
            a(f'buffer_load_dwordx4 v[{10+4*k}:{13+4*k}], v1, s[4:7], s63 offen sc1')
        for j in range(4): a(f'v_mov_b32 v{42+j}, v{162+j}')
        a('s_waitcnt lgkmcnt(0)')
        final_math(a, 7)
        if DIAG:
            a('s_waitcnt vmcnt(0)')
            rt(5)
            a('s_cmp_lg_u32 s2, 255')
            a('s_cbranch_scc1 C_fin')
            a('s_cmp_lg_u32 s3, 8')
            a('s_cbranch_scc1 C_fin')
            a('v_lshlrev_b32 v2, 2, v0')
            a(f's_mov_b32 s63, {WS_DG}')
            a('buffer_load_dword v10, v2, s[4:7], s63 offen sc1')
            a('s_waitcnt vmcnt(0)')
            for i in range(6):
                a(f'v_writelane_b32 v10, s{90+i}, {8+i}')
            a('v_writelane_b32 v10, s96, 15')
            a('v_readlane_b32 s63, v10, 14')
            a('s_nop 3')
            a('v_subrev_u32 v10, s63, v10')
            a('v_lshrrev_b32 v11, 7, v10')
            a('v_and_b32 v10, 127, v10')
            a('v_cvt_f32_u32 v10, v10')
            a('v_cvt_f32_u32 v11, v11')
            a('v_cvt_pk_bf16_f32 v10, v10, v11')
            a('buffer_store_dword v10, v2, s[12:15], 0 offen')
        a.label('C_fin')
    if PROF: a('s_waitcnt vmcnt(0)')
    stamp.dump(12, 3)
    a.label('C_done')
    a('s_endpgm')
    return name, a.maxv + 1, a.maxs + 1

def gen_final(a):
    name = 'final_kernel'
    kstart(a, name)
    a('s_cmp_ge_u32 s2, 576')
    a('s_cbranch_scc1 D_done')
    stamp = Stamps(a, 3)
    stamp()
    a(f's_load_dwordx2 s[20:21], s[0:1], {KA["ws"]}')
    a(f's_load_dwordx2 s[22:23], s[0:1], {KA["b2"]}')
    a(f's_load_dwordx2 s[24:25], s[0:1], {KA["out"]}')
    a('v_lshrrev_b32 v2, 6, v0')
    a('v_and_b32 v0, 63, v0')
    a('v_readfirstlane_b32 s75, v2')
    a('v_lshlrev_b32 v1, 4, v0')
    a('s_and_b32 s26, s2, 7')
    a('s_lshr_b32 s27, s2, 3')
    a('s_mul_i32 s26, s26, 72')
    a('s_add_u32 s3, s26, s27')
    a('s_lshl_b32 s3, s3, 2')
    a('s_add_u32 s3, s3, s75')
    a(f's_mul_hi_u32 s26, s3, {(2**32 + 71) // 72}')
    a('s_mul_i32 s27, s26, 72')
    a('s_sub_u32 s27, s3, s27')
    a('s_lshr_b32 s31, s27, 1')
    a('s_and_b32 s32, s27, 1')
    a('s_lshl_b32 s3, s3, 10')
    a('v_lshrrev_b32 v7, 4, v0')
    a('s_waitcnt lgkmcnt(0)')
    srd(a, 4, 20, SZ['ws']); srd(a, 8, 22, SZ['b2']); srd(a, 12, 24, SZ['out'])
    stamp()
    final_params(a)
    final_loads(a, 's3', '')
    stamp()
    final_math(a, 9)
    stamp()
    if PROF: a('s_waitcnt vmcnt(0)')
    stamp.dump(4, 75)
    a.label('D_done')
    a('s_endpgm')
    return name, a.maxv + 1, a.maxs + 1

DOC = '''; ---------------------------------------------------------------------------------------------
; Two launches (generated by the author's own script; every instruction is hand-specified).
;     LN1   (64)  row statistics of x and a token-blocked transpose of x
;     COLL  (1)   gathers the producers' ready words, raises one go word in d_debug
;                 convolution, residual x2; also re-lays a piece of w1/w2 into MFMA operand order
;  mlp_kernel   : 32 token blocks x 8 hidden slices; double LayerNorm prologue, GEMM1+GELU, GEMM2,
;                 partial sums exchanged through d_ws (write-through stores + ready words) and reduced
; ---------------------------------------------------------------------------------------------
'''

def main(out):
    a = Asm()
    hdr = open(f'cdna_kernels/{NAME}.s.ref').read().split('\n')
    head = [l for l in hdr if l.startswith(';') and '@launch' not in l and 'Override' not in l and 'grid=ceil' not in l]
    ks = []
    body = Asm()
    for g in ((gen_prep, gen_mlp) if FUSE else (gen_prep, gen_mlp, gen_final)):
        r = g(body)
        if r: ks.append(r)
    launches = [
        f'; @launch kernel=front_kernel grid=({A_END},1,1) block=(256,1,1) lds={A_LDS}',
        f'; @launch kernel=mlp_kernel grid=(256,1,1) block=(768,1,1) lds={C_LDS}',
    ] + ([] if FUSE else [f'; @launch kernel=final_kernel grid=(576,1,1) block=(256,1,1) lds=0'])
    if ONEK: launches = [f'; @launch grid=(256,1,1) block=(768,1,1) lds={C_LDS}']
    txt = '\n'.join(head + launches) + '\n' + DOC + '.amdgcn_target "amdgcn-amd-amdhsa--gfx950"\n.text\n' + body.text()
    txt += 'text_end:\n.section .rodata,"a"\n'
    for n, nv, ns in ks:
        txt += '.p2align 6\n' + ('kd_here:\n' if n == 'mlp_kernel' and os.environ.get('KDPF') == '1' else '') + kdesc(n, nv, max(ns, 16))
        print(n, 'vgpr', nv, 'sgpr', ns, file=sys.stderr)
    print('nops', body.nops, 'lines', len(body.lines), file=sys.stderr)
    open(out, 'w').write(txt)

if __name__ == '__main__':
    main(sys.argv[1] if len(sys.argv) > 1 else f'cdna_kernels/{NAME}.s')
```
